```python
import torch

def _softmax(x, axis=-1):
    return torch.softmax(x, dim=axis)

def _gelu(x):
    return torch.nn.functional.gelu(x, approximate='tanh')

def _silu(x):
    return torch.nn.functional.silu(x)

def _sigmoid(x):
    return torch.sigmoid(x)

def _layernorm(x, axis=-1, eps=1e-05):
    m = x.mean(dim=axis, keepdim=True)
    v = x.var(dim=axis, keepdim=True, unbiased=False)
    return (x - m) / torch.sqrt(v + eps)

def _scatter_add(tgt, idx, src, axis=0):
    return tgt.clone().index_add_(axis, idx, src)

def _segment_sum(src, seg, n):
    out = torch.zeros((n,) + src.shape[1:], dtype=src.dtype)
    return out.index_add_(0, seg, src)

def _pad(x, pw):
    flat = tuple((v for pair in reversed(pw) for v in pair))
    return torch.nn.functional.pad(x, flat)
kernel_name = 'concat_heads__memory_aug_recurrent_mem_tr__compressed_kv_cla__prompt'

def setup_inputs():

    _w = lambda a: (lambda t: t.to(torch.bfloat16) if t.is_floating_point() else t)(torch.as_tensor(a))

    def _A_setup():
        B, S, Dm = (1, 2048, 448)
        H, Dh = (16, 256)
        M, seg = (8, 32)
        seg = min(seg, S)
        S = S // seg * seg
        return {'x': _w((lambda *s: torch.randn(*s, dtype=torch.bfloat16) * 0.05)(B, S, Dm)), 'mem0': _w((lambda *s: torch.randn(*s, dtype=torch.bfloat16) * 0.4)(B, M, Dm)), 'Wq': _w((lambda *s: torch.randn(*s, dtype=torch.bfloat16) * 6.4)(Dm, H, Dh) * Dm ** (-0.5)), 'Wk': _w((lambda *s: torch.randn(*s, dtype=torch.bfloat16) * 6.4)(Dm, H, Dh) * Dm ** (-0.5)), 'Wv': _w((lambda *s: torch.randn(*s, dtype=torch.bfloat16) * 0.4)(Dm, H, Dh) * Dm ** (-0.5)), 'Wo': _w((lambda *s: torch.randn(*s, dtype=torch.bfloat16) * 0.4)(H, Dh, Dm) * (H * Dh) ** (-0.5)), 'seg_len': seg}
    _A_in = _A_setup()

    def _B_setup():
        B, H, Sq, Sk, D, M = (1, 16, 2048, 2048, 256, 448)
        Dc = 4 * D
        return {'x': _w((lambda *s: torch.randn(*s, dtype=torch.bfloat16) * 1.6)(B, Sq, M)), 'c_kv': _w((lambda *s: torch.randn(*s, dtype=torch.bfloat16) * 0.2)(B, Sk, Dc)), 'w_q': _w((lambda *s: torch.randn(*s, dtype=torch.bfloat16) * 3.2)(M, H, D) * M ** (-0.5)), 'w_uk': _w((lambda *s: torch.randn(*s, dtype=torch.bfloat16) * 3.2)(Dc, H, D) * Dc ** (-0.5)), 'w_uv': _w((lambda *s: torch.randn(*s, dtype=torch.bfloat16) * 0.2)(Dc, H, D) * Dc ** (-0.5)), 'w_o': _w((lambda *s: torch.randn(*s, dtype=torch.bfloat16) * 0.2)(H, D, M) * (H * D) ** (-0.5))}
    _B_in = _B_setup()
    return {'A_x': _A_in['x'], 'A_mem0': _A_in['mem0'], 'A_Wq': _A_in['Wq'], 'A_Wk': _A_in['Wk'], 'A_Wv': _A_in['Wv'], 'A_Wo': _A_in['Wo'], 'A_seg_len': _A_in['seg_len'], 'B_x': _B_in['x'], 'B_c_kv': _B_in['c_kv'], 'B_w_q': _B_in['w_q'], 'B_w_uk': _B_in['w_uk'], 'B_w_uv': _B_in['w_uv'], 'B_w_o': _B_in['w_o']}

def reference(A_x, A_mem0, A_Wq, A_Wk, A_Wv, A_Wo, A_seg_len, B_x, B_c_kv, B_w_q, B_w_uk, B_w_uv, B_w_o):

    def _A_ref(x, mem0, Wq, Wk, Wv, Wo, seg_len):
        B, S, Dm = x.shape
        H, Dh = (Wq.shape[1], Wq.shape[2])
        M = mem0.shape[1]
        scale = Dh ** (-0.5)
        n_seg = S // seg_len
        L = M + seg_len
        idx = torch.arange(L)
        mask = (idx[:, None] < M) | (idx[:, None] >= idx[None, :])
        mem = mem0
        outs = []
        for s in range(n_seg):
            xs = x[:, s * seg_len:(s + 1) * seg_len, :].clone()
            h = torch.concatenate([mem, xs], axis=1)
            q = torch.einsum('btd,dhe->bhte', h, Wq)
            k = torch.einsum('btd,dhe->bhte', h, Wk)
            v = torch.einsum('btd,dhe->bhte', h, Wv)
            scores = torch.einsum('bhqe,bhke->bhqk', q, k) * scale
            scores = torch.where(mask[None, None], scores, -1000000000.0)
            p = _softmax(scores, axis=-1)
            o = torch.einsum('bhqk,bhke->bhqe', p, v)
            o = torch.einsum('bhte,hed->btd', o, Wo)
            mem = o[:, :M, :].clone()
            outs.append(o[:, M:, :])
        return torch.concatenate(outs, axis=1)

    def _B_ref(x, c_kv, w_q, w_uk, w_uv, w_o):
        B, Sq, M = (x.shape[0], x.shape[1], x.shape[2])
        Sk = c_kv.shape[1]
        H, D = (w_q.shape[1], w_q.shape[2])
        q = torch.einsum('bqm,mhd->bhqd', x, w_q)
        k = torch.einsum('bkc,chd->bhkd', c_kv, w_uk)
        v = torch.einsum('bkc,chd->bhkd', c_kv, w_uv)
        scores = torch.einsum('bhqd,bhkd->bhqk', q, k) * D ** (-0.5)
        off = Sk - Sq
        qi = torch.arange(Sq)[:, None]
        kj = torch.arange(Sk)[None, :]
        cmask = kj <= qi + off
        scores = torch.where(cmask[None, None], scores, -1000000000.0)
        p = _softmax(scores, axis=-1)
        ctx = torch.einsum('bhqk,bhkd->bhqd', p, v)
        return torch.einsum('bhqd,hdm->bqm', ctx, w_o)
    a = _A_ref(A_x, A_mem0, A_Wq, A_Wk, A_Wv, A_Wo, A_seg_len)
    b = _B_ref(B_x, B_c_kv, B_w_q, B_w_uk, B_w_uv, B_w_o)
    return torch.concatenate([a, b], axis=-1)
```

```python
class Asm:
    def __init__(self):
        self.lines = []
        self.uid = 0
    def __call__(self, s):
        self.lines.append("    " + s)
    def label(self, s):
        self.lines.append(s + ":")
    def raw(self, s):
        self.lines.append(s)
    def newlabel(self, p="L"):
        self.uid += 1
        return f"{p}_{self.uid}"
    def text(self):
        return "\n".join(self.lines) + "\n"

def vr(a, n=1):
    return f"v{a}" if n == 1 else f"v[{a}:{a+n-1}]"
def sr(a, n=1):
    return f"s{a}" if n == 1 else f"s[{a}:{a+n-1}]"
def ar(a, n=1):
    return f"a{a}" if n == 1 else f"a[{a}:{a+n-1}]"
```

```python
from asmlib import *
import layout as L
from gemm import load_ptrs, ptr, WSP
KS=528; VS=576
LK=0; LV=64*KS; AT_LDS=LV+64*VS

def attn_b_body(a):
    done=a.newlabel("adone"); top=a.newlabel("atop"); a.label(top)
    a("s_cmp_ge_u32 s2, 256"); a(f"s_cbranch_scc1 {done}")
    load_ptrs(a)
    a("s_and_b32 s60, s2, 15")
    a("s_lshr_b32 s61, s2, 4"); a("s_sub_u32 s61, 15, s61")
    a("v_and_b32 v1, 63, v0"); a("v_lshrrev_b32 v2, 6, v0")
    a("v_and_b32 v3, 31, v1"); a("v_lshrrev_b32 v4, 5, v1")
    a("s_waitcnt lgkmcnt(0)")
    a("s_lshl_b32 s62, s61, 7")
    a("v_lshl_add_u32 v5, v2, 5, v3"); a("v_add_u32 v5, s62, v5")
    a("v_lshlrev_b32 v6, 13, v5"); a("v_lshl_add_u32 v6, v4, 4, v6")
    a("s_lshl_b32 s63, s60, 9"); a(f"s_add_u32 s63, s63, {L.QB}"); a("v_add_u32 v6, s63, v6")
    for ks in range(16):
        a(f"global_load_dwordx4 v[{64+4*ks}:{67+4*ks}], v6, s[{WSP}:{WSP+1}] offset:{ks*32}")
    a("s_waitcnt vmcnt(0)")
    for i in range(64): a(f"v_accvgpr_write_b32 a{i}, v{64+i}")
    for i in range(128): a(f"v_mov_b32 v{128+i}, 0")
    a("v_mov_b32 v8, 0xf149f2ca")
    a("v_mov_b32 v9, 0")
    a("v_lshrrev_b32 v10, 5, v0"); a("v_and_b32 v11, 31, v0")
    a("v_lshlrev_b32 v12, 14, v10"); a("v_lshl_add_u32 v12, v11, 4, v12")
    a("s_lshl_b32 s63, s60, 9"); a(f"s_add_u32 s63, s63, {L.KVB}"); a("v_add_u32 v12, s63, v12")
    a(f"v_mul_u32_u24 v13, {KS}, v10"); a("v_lshl_add_u32 v13, v11, 4, v13")
    a(f"v_mul_u32_u24 v14, {VS}, v10"); a("v_lshl_add_u32 v14, v11, 4, v14"); a(f"v_add_u32 v14, {LV}, v14")
    a(f"v_mul_u32_u24 v15, {KS}, v3"); a("v_lshl_add_u32 v15, v4, 4, v15")
    a("v_and_b32 v16, 15, v1"); a("v_lshrrev_b32 v17, 2, v16"); a("v_lshl_add_u32 v17, v4, 2, v17")
    a(f"v_mul_u32_u24 v17, {VS}, v17"); a("v_and_b32 v16, 3, v16"); a("v_lshl_add_u32 v17, v16, 3, v17")
    a("v_bfe_u32 v16, v1, 4, 1"); a("v_lshl_add_u32 v17, v16, 5, v17"); a(f"v_add_u32 v17, {LV}, v17")
    a("s_add_u32 s64, s61, 1"); a("s_lshl_b32 s64, s64, 1")
    a("s_mov_b32 s65, 0")
    a("v_mov_b32 v19, 0x3e38aa3b")
    a("v_mov_b32 v19, 0x3db8aa3b")
    loop=a.newlabel("aloop"); a.label(loop)
    for p in range(8):
        a(f"global_load_dwordx4 v[{64+4*p}:{67+4*p}], v12, s[{WSP}:{WSP+1}] offset:0")
        a(f"v_add_u32 v12, {8*16384}, v12")
    a(f"v_subrev_u32 v12, {64*16384-8192}, v12")
    for p in range(8):
        a(f"global_load_dwordx4 v[{96+4*p}:{99+4*p}], v12, s[{WSP}:{WSP+1}] offset:0")
        a(f"v_add_u32 v12, {8*16384}, v12")
    a("v_subrev_u32 v12, 8192, v12")
    a("s_barrier")
    a("s_waitcnt vmcnt(0)")
    for p in range(8):
        a(f"ds_write_b128 v13, v[{64+4*p}:{67+4*p}] offset:{p*8*KS}")
        a(f"ds_write_b128 v14, v[{96+4*p}:{99+4*p}] offset:{p*8*VS}")
    a("s_waitcnt lgkmcnt(0)")
    a("s_barrier")
    for i in range(32): a(f"v_mov_b32 v{32+i}, 0")
    for ks in range(16):
        for mt in range(2):
            a(f"ds_read_b128 v[{20+4*mt}:{23+4*mt}], v15 offset:{mt*32*KS+ks*32}")
        a("s_waitcnt lgkmcnt(0)")
        for mt in range(2):
            a(f"v_mfma_f32_32x32x16_bf16 v[{32+16*mt}:{47+16*mt}], v[{20+4*mt}:{23+4*mt}], a[{4*ks}:{4*ks+3}], v[{32+16*mt}:{47+16*mt}]")
    a("s_nop 15")
    a("v_lshl_add_u32 v18, v4, 2, s65")
    a("v_sub_u32 v18, v5, v18")
    a("v_mov_b32 v28, 0xf149f2ca")
    for mt in range(2):
        for i in range(16):
            off=32*mt+8*(i//4)+i%4
            a(f"v_cmp_le_i32 vcc, {off}, v18")
            a(f"v_cndmask_b32 v{32+16*mt+i}, v28, v{32+16*mt+i}, vcc")
    a("v_mov_b32 v20, v8")
    for i in range(32): a(f"v_max_f32 v20, v20, v{32+i}")
    a("v_mov_b32 v21, v20"); a("s_nop 1"); a("v_permlane32_swap_b32 v21, v20")
    a("v_max_f32 v20, v20, v21")
    a("v_sub_f32 v22, v8, v20"); a("v_mul_f32 v22, v19, v22"); a("v_exp_f32 v22, v22")
    a("v_mov_b32 v8, v20")
    a("v_mov_b32 v23, 0")
    for i in range(32):
        a(f"v_sub_f32 v{32+i}, v{32+i}, v20"); a(f"v_mul_f32 v{32+i}, v19, v{32+i}"); a(f"v_exp_f32 v{32+i}, v{32+i}")
    a("s_nop 0")
    for i in range(32): a(f"v_add_f32 v23, v23, v{32+i}")
    a("v_mul_f32 v9, v9, v22"); a("v_add_f32 v9, v9, v23")
    for i in range(128): a(f"v_mul_f32 v{128+i}, v22, v{128+i}")
    for i in range(16): a(f"v_cvt_pk_bf16_f32 v{32+i}, v{32+2*i}, v{33+2*i}")
    a("s_nop 1")
    for u in range(4):
        for dt in range(8):
            a(f"ds_read_b64_tr_b16 v[24:25], v17 offset:{(16*u)*VS+dt*64}")
            a(f"ds_read_b64_tr_b16 v[26:27], v17 offset:{(16*u+8)*VS+dt*64}")
            a("s_waitcnt lgkmcnt(0)")
            a(f"v_mfma_f32_32x32x16_bf16 v[{128+16*dt}:{143+16*dt}], v[24:27], v[{32+4*u}:{35+4*u}], v[{128+16*dt}:{143+16*dt}]")
    a("s_add_u32 s65, s65, 64")
    a("s_sub_u32 s64, s64, 1"); a("s_cmp_lg_u32 s64, 0"); a(f"s_cbranch_scc1 {loop}")
    a("s_nop 15")
    a("v_mov_b32 v21, v9"); a("s_nop 1"); a("v_permlane32_swap_b32 v21, v9"); a("v_add_f32 v9, v9, v21")
    a("v_rcp_f32 v9, v9")
    a("v_lshlrev_b32 v6, 13, v5"); a("v_lshl_add_u32 v6, v4, 3, v6")
    a("s_lshl_b32 s63, s60, 9"); a(f"s_add_u32 s63, s63, {L.OB}"); a("v_add_u32 v6, s63, v6")
    for dt in range(8):
        for q in range(4):
            r=128+16*dt+4*q
            for j in range(4): a(f"v_mul_f32 v{r+j}, v9, v{r+j}")
            a(f"v_cvt_pk_bf16_f32 v{r}, v{r}, v{r+1}"); a(f"v_cvt_pk_bf16_f32 v{r+1}, v{r+2}, v{r+3}")
            a(f"global_store_dwordx2 v6, v[{r}:{r+1}], s[{WSP}:{WSP+1}] offset:{(32*dt+8*q)*2}")
    a("s_add_u32 s2, s2, 192"); a("s_barrier"); a(f"s_branch {top}")
    a.label(done); a("s_endpgm")

def attn_a_body(a):
    done=a.newlabel("aadone")
    a("s_cmp_ge_u32 s2, 512"); a(f"s_cbranch_scc1 {done}")
    load_ptrs(a)
    a("s_lshr_b32 s61, s2, 3"); a("s_and_b32 s60, s2, 7")
    a("v_and_b32 v1, 63, v0"); a("v_lshrrev_b32 v2, 6, v0")
    a("v_and_b32 v3, 31, v1"); a("v_lshrrev_b32 v4, 5, v1")
    a("v_lshl_add_u32 v7, s60, 1, v2")
    a(f"v_mul_u32_u24 v29, {AT_LDS}, v2")
    a("s_waitcnt lgkmcnt(0)")
    a("v_mov_b32 v64, 0"); a("v_mov_b32 v65, 0"); a("v_mov_b32 v66, 0"); a("v_mov_b32 v67, 0")
    a("v_lshl_add_u32 v6, v1, 4, v29")
    for r in range(AT_LDS//1024+1):
        if r*1024 < AT_LDS:
            a(f"ds_write_b128 v6, v[64:67]"); a("v_add_u32 v6, 1024, v6")
    a("s_lshl_b32 s62, s61, 5")
    a("v_add_u32 v5, s62, v3")
    a("v_mul_u32_u24 v6, 24576, v5"); a("v_lshl_add_u32 v6, v4, 4, v6"); a("v_lshl_add_u32 v6, v7, 9, v6")
    for ks in range(16):
        a(f"global_load_dwordx4 v[{64+4*ks}:{67+4*ks}], v6, s[{WSP}:{WSP+1}] offset:{ks*32}")
    a("s_waitcnt vmcnt(0)")
    for i in range(64): a(f"v_accvgpr_write_b32 a{i}, v{64+i}")
    a("v_lshrrev_b32 v10, 5, v1")
    a("v_add_u32 v12, s62, v10"); a("v_mul_u32_u24 v12, 24576, v12"); a("v_lshl_add_u32 v12, v3, 4, v12"); a("v_lshl_add_u32 v12, v7, 9, v12")
    a(f"v_mul_u32_u24 v13, {KS}, v10"); a("v_lshl_add_u32 v13, v3, 4, v13"); a("v_add_u32 v13, v13, v29")
    a(f"v_mul_u32_u24 v14, {VS}, v10"); a("v_lshl_add_u32 v14, v3, 4, v14"); a("v_add_u32 v14, v14, v29"); a(f"v_add_u32 v14, {LV}, v14")
    a("s_waitcnt lgkmcnt(0)")
    for p in range(16):
        a(f"global_load_dwordx4 v[64:67], v12, s[{WSP}:{WSP+1}] offset:0")
        a(f"v_add_u32 v11, 8192, v12")
        a(f"global_load_dwordx4 v[68:71], v11, s[{WSP}:{WSP+1}] offset:0")
        a(f"v_add_u32 v11, 8192, v11")
        a(f"global_load_dwordx4 v[72:75], v11, s[{WSP}:{WSP+1}] offset:0")
        a(f"v_add_u32 v12, {2*24576}, v12")
        a("s_waitcnt vmcnt(0)")
        a(f"ds_write_b128 v13, v[68:71] offset:{(8+2*p)*KS}")
        a(f"ds_write_b128 v14, v[72:75] offset:{(8+2*p)*VS}")
    a("s_mul_i32 s63, s61, 196608"); a(f"s_add_u32 s63, s63, {L.QKVM+8192}")
    a("v_mul_u32_u24 v12, 24576, v10"); a("v_lshl_add_u32 v12, v3, 4, v12"); a("v_lshl_add_u32 v12, v7, 9, v12"); a("v_add_u32 v12, s63, v12")
    for p in range(4):
        a(f"global_load_dwordx4 v[68:71], v12, s[{WSP}:{WSP+1}] offset:0")
        a(f"v_add_u32 v11, 8192, v12")
        a(f"global_load_dwordx4 v[72:75], v11, s[{WSP}:{WSP+1}] offset:0")
        a(f"v_add_u32 v12, {2*24576}, v12")
        a("s_waitcnt vmcnt(0)")
        a(f"ds_write_b128 v13, v[68:71] offset:{(2*p)*KS}")
        a(f"ds_write_b128 v14, v[72:75] offset:{(2*p)*VS}")
    a("s_waitcnt lgkmcnt(0)")
    a(f"v_mul_u32_u24 v15, {KS}, v3"); a("v_lshl_add_u32 v15, v4, 4, v15"); a("v_add_u32 v15, v15, v29")
    a("v_and_b32 v16, 15, v1"); a("v_lshrrev_b32 v17, 2, v16"); a("v_lshl_add_u32 v17, v4, 2, v17")
    a(f"v_mul_u32_u24 v17, {VS}, v17"); a("v_and_b32 v16, 3, v16"); a("v_lshl_add_u32 v17, v16, 3, v17")
    a("v_bfe_u32 v16, v1, 4, 1"); a("v_lshl_add_u32 v17, v16, 5, v17"); a(f"v_add_u32 v17, {LV}, v17"); a("v_add_u32 v17, v17, v29")
    for i in range(32): a(f"v_mov_b32 v{32+i}, 0")
    for i in range(128): a(f"v_mov_b32 v{128+i}, 0")
    for ks in range(16):
        for mt in range(2):
            a(f"ds_read_b128 v[{20+4*mt}:{23+4*mt}], v15 offset:{mt*32*KS+ks*32}")
        a("s_waitcnt lgkmcnt(0)")
        for mt in range(2):
            a(f"v_mfma_f32_32x32x16_bf16 v[{32+16*mt}:{47+16*mt}], v[{20+4*mt}:{23+4*mt}], a[{4*ks}:{4*ks+3}], v[{32+16*mt}:{47+16*mt}]")
    a("s_nop 15")
    a("v_lshlrev_b32 v18, 2, v4"); a("v_sub_u32 v18, v3, v18"); a("v_add_u32 v18, 8, v18")
    a("v_mov_b32 v28, 0xf149f2ca"); a("v_mov_b32 v19, 0x3db8aa3b")
    for mt in range(2):
        for i in range(16):
            off=32*mt+8*(i//4)+i%4
            a(f"v_cmp_le_i32 vcc, {off}, v18")
            a(f"v_cndmask_b32 v{32+16*mt+i}, v28, v{32+16*mt+i}, vcc")
    a("v_mov_b32 v20, v32")
    for i in range(1,32): a(f"v_max_f32 v20, v20, v{32+i}")
    a("v_mov_b32 v21, v20"); a("s_nop 1"); a("v_permlane32_swap_b32 v21, v20"); a("v_max_f32 v20, v20, v21")
    a("v_mov_b32 v9, 0")
    for i in range(32):
        a(f"v_sub_f32 v{32+i}, v{32+i}, v20"); a(f"v_mul_f32 v{32+i}, v19, v{32+i}"); a(f"v_exp_f32 v{32+i}, v{32+i}")
    a("s_nop 0")
    for i in range(32): a(f"v_add_f32 v9, v9, v{32+i}")
    a("v_mov_b32 v21, v9"); a("s_nop 1"); a("v_permlane32_swap_b32 v21, v9"); a("v_add_f32 v9, v9, v21")
    a("v_rcp_f32 v9, v9"); a("s_nop 0")
    for i in range(32): a(f"v_mul_f32 v{32+i}, v9, v{32+i}")
    for i in range(16): a(f"v_cvt_pk_bf16_f32 v{32+i}, v{32+2*i}, v{33+2*i}")
    a("s_nop 1")
    for u in range(4):
        for dt in range(8):
            a(f"ds_read_b64_tr_b16 v[24:25], v17 offset:{(16*u)*VS+dt*64}")
            a(f"ds_read_b64_tr_b16 v[26:27], v17 offset:{(16*u+8)*VS+dt*64}")
            a("s_waitcnt lgkmcnt(0)")
            a(f"v_mfma_f32_32x32x16_bf16 v[{128+16*dt}:{143+16*dt}], v[24:27], v[{32+4*u}:{35+4*u}], v[{128+16*dt}:{143+16*dt}]")
    a("s_nop 15")
    a("v_lshlrev_b32 v6, 13, v5"); a("v_lshl_add_u32 v6, v4, 3, v6"); a("v_lshl_add_u32 v6, v7, 9, v6"); a(f"v_add_u32 v6, {L.OA}, v6")
    for dt in range(8):
        for q in range(4):
            r=128+16*dt+4*q
            a(f"v_cvt_pk_bf16_f32 v{r}, v{r}, v{r+1}"); a(f"v_cvt_pk_bf16_f32 v{r+1}, v{r+2}, v{r+3}")
            a(f"global_store_dwordx2 v6, v[{r}:{r+1}], s[{WSP}:{WSP+1}] offset:{(32*dt+8*q)*2}")
    a.label(done); a("s_endpgm")
```

```python
from asmlib import *
import layout as L
from gemm import load_ptrs, ptr, WSP

MEMS=912; QS=528; KS=528; VS=576; OS=528
LO=0; LQ=LO+16*OS; LMEM=LQ+16*QS; LK=LMEM+16*MEMS; LV=LK+64*KS; CH_LDS=LV+64*VS
FL1=L.FLAGS; FL2=L.FLAGS+256

def chain_body(a, s_first, s_last, nwg=64):
    done=a.newlabel("cdone")
    a(f"s_cmp_ge_u32 s2, {nwg}")
    a(f"s_cbranch_scc1 {done}")
    load_ptrs(a)
    a("v_and_b32 v1, 63, v0")
    a("v_lshrrev_b32 v2, 6, v0")
    a("s_nop 0")
    a("v_readfirstlane_b32 s60, v2")
    a("s_waitcnt lgkmcnt(0)")
    a("v_lshrrev_b32 v3, 1, v1")
    a("v_and_b32 v4, 1, v1")
    a("v_lshlrev_b32 v5, 13, v3")
    a("v_lshl_add_u32 v5, v4, 4, v5")
    a("v_mul_u32_u24 v6, 14336, v2")
    a("v_lshl_add_u32 v7, v3, 5, v6")
    a("v_lshl_add_u32 v7, v4, 4, v7")
    a("v_and_b32 v8, 15, v1")
    a("v_lshrrev_b32 v9, 4, v1")
    a("v_lshrrev_b32 v10, 2, v8")
    a("v_lshl_add_u32 v10, v9, 3, v10")
    a("v_lshlrev_b32 v10, 5, v10")
    a("v_and_b32 v8, 3, v8")
    a("v_lshl_add_u32 v10, v8, 3, v10")
    a("v_add_u32 v10, v10, v6")
    for i in range(3):
        a(f"s_mul_i32 s61, s2, 12")
        a(f"s_mul_i32 s62, s60, 3")
        a(f"s_add_u32 s61, s61, s62")
        a(f"s_add_u32 s61, s61, {i}")
        a("s_lshr_b32 s62, s61, 8")
        a("s_and_b32 s61, s61, 255")
        a("s_lshl_b32 s61, s61, 5")
        a("s_lshl_b32 s62, s62, 1")
        a("s_add_u32 s62, s62, 20")
        a("s_cmp_eq_u32 s62, 20"); a("s_cselect_b32 s64, s20, s22"); a("s_cselect_b32 s65, s21, s23")
        a("s_cmp_eq_u32 s62, 24"); a("s_cselect_b32 s64, s24, s64"); a("s_cselect_b32 s65, s25, s65")
        a("s_add_u32 s64, s64, s61"); a("s_addc_u32 s65, s65, 0")
        for r in range(14):
            a(f"global_load_dwordx4 v[{16+4*r}:{19+4*r}], v5, s[64:65] offset:0")
            a(f"v_add_u32 v5, 0x40000, v5")
        a("v_subrev_u32 v5, 0x380000, v5")
        a("s_waitcnt vmcnt(0)")
        for r in range(14):
            a(f"ds_write_b128 v7, v[{16+4*r}:{19+4*r}] offset:{r*1024}")
        a("s_waitcnt lgkmcnt(0)")
        for ks in range(14):
            for j in range(2):
                a(f"ds_read_b64_tr_b16 v[{80+2*j}:{81+2*j}], v10 offset:{(ks*32+4*j)*32}")
            a("s_waitcnt lgkmcnt(0)")
            for j in range(4):
                a(f"v_accvgpr_write_b32 a{(i*14+ks)*4+j}, v{80+j}")
    a("s_lshr_b32 s66, s2, 2")
    a("s_and_b32 s67, s2, 3")
    for i in range(2):
        a(f"s_add_u32 s61, s60, {4*i}")
        a("s_min_u32 s61, s61, 6")
        a("s_lshl_b32 s61, s61, 5")
        a("s_mul_i32 s62, s67, 224")
        a("s_add_u32 s61, s61, s62")
        a("s_mul_i32 s62, s66, 229376")
        a("s_add_u32 s61, s61, s62")
        a(f"s_add_u32 s64, s{ptr(5)}, s61"); a(f"s_addc_u32 s65, s{ptr(5)+1}, 0")
        a("v_mul_u32_u24 v5, 896, v3")
        a("v_lshl_add_u32 v5, v4, 4, v5")
        for r in range(8):
            a(f"global_load_dwordx4 v[{16+4*r}:{19+4*r}], v5, s[64:65] offset:0")
            a(f"v_add_u32 v5, {32*896}, v5")
        a("s_waitcnt vmcnt(0)")
        for r in range(8):
            a(f"ds_write_b128 v7, v[{16+4*r}:{19+4*r}] offset:{r*1024}")
        a("s_waitcnt lgkmcnt(0)")
        for ks in range(8):
            for j in range(2):
                a(f"ds_read_b64_tr_b16 v[{80+2*j}:{81+2*j}], v10 offset:{(ks*32+4*j)*32}")
            a("s_waitcnt lgkmcnt(0)")
            for j in range(4):
                a(f"v_accvgpr_write_b32 a{168+(i*8+ks)*4+j}, v{80+j}")
    a("s_barrier")
    a("v_mov_b32 v16, 0"); a("v_mov_b32 v17, 0"); a("v_mov_b32 v18, 0"); a("v_mov_b32 v19, 0")
    a("v_lshlrev_b32 v5, 4, v0")
    nz=(CH_LDS+4095)//4096
    for r in range(nz):
        a(f"ds_write_b128 v5, v[16:19]")
        a("v_add_u32 v5, 4096, v5")
    a("s_waitcnt lgkmcnt(0)")
    a("s_barrier")
    a("v_and_b32 v11, 15, v1")
    a("v_lshrrev_b32 v12, 4, v1")
    a("v_mov_b32 v13, 0")
    a(f"s_mov_b32 s68, {s_first}")
    loop=a.newlabel("cloop")
    a.label(loop)
    skipw=a.newlabel("cskipw")
    a("s_cmp_eq_u32 s68, 0")
    a(f"s_cbranch_scc1 {skipw}")
    poll(a, FL2, "s68")
    a.label(skipw)
    isz=a.newlabel("cmem0"); mdone=a.newlabel("cmemd")
    a("s_cmp_eq_u32 s68, 0")
    a(f"s_cbranch_scc1 {isz}")
    a("s_mul_i32 s61, s68, 14336")
    a(f"s_add_u32 s61, s61, {L.MEMACC}")
    for i in range(4):
        a(f"v_add_u32 v5, {256*i}, v0")
        a("v_cmp_gt_u32 vcc, 896, v5")
        a("s_and_saveexec_b64 s[70:71], vcc")
        a("v_lshlrev_b32 v6, 4, v5")
        a("v_add_u32 v6, s61, v6")
        a(f"global_load_dwordx4 v[16:19], v6, s[{WSP}:{WSP+1}] sc0 sc1")
        a("v_mul_u32_u24 v7, 0x4925, v5")
        a("v_lshrrev_b32 v7, 21, v7")
        a("v_mul_u32_u24 v8, 112, v7")
        a("v_sub_u32 v8, v5, v8")
        a(f"v_mul_u32_u24 v7, {MEMS}, v7")
        a("v_lshl_add_u32 v7, v8, 3, v7")
        a("s_waitcnt vmcnt(0)")
        a("v_cvt_pk_bf16_f32 v16, v16, v17")
        a("v_cvt_pk_bf16_f32 v17, v18, v19")
        a(f"ds_write_b64 v7, v[16:17] offset:{LMEM}")
        a("s_mov_b64 exec, s[70:71]")
    a(f"s_branch {mdone}")
    a.label(isz)
    for i in range(2):
        a(f"v_add_u32 v5, {256*i}, v0")
        a("v_cmp_gt_u32 vcc, 448, v5")
        a("s_and_saveexec_b64 s[70:71], vcc")
        a("v_lshlrev_b32 v6, 4, v5")
        a(f"global_load_dwordx4 v[16:19], v6, s[{ptr(1)}:{ptr(1)+1}]")
        a("v_mul_u32_u24 v7, 0x2493, v5")
        a("v_lshrrev_b32 v7, 19, v7")
        a("v_mul_u32_u24 v8, 56, v7")
        a("v_sub_u32 v8, v5, v8")
        a(f"v_mul_u32_u24 v7, {MEMS}, v7")
        a("v_lshl_add_u32 v7, v8, 4, v7")
        a("s_waitcnt vmcnt(0)")
        a(f"ds_write_b128 v7, v[16:19] offset:{LMEM}")
        a("s_mov_b64 exec, s[70:71]")
    a.label(mdone)
    a("s_waitcnt lgkmcnt(0)")
    a("s_barrier")
    a(f"v_mul_u32_u24 v5, {MEMS}, v11")
    a("v_lshl_add_u32 v5, v12, 4, v5")
    for i in range(12): a(f"v_mov_b32 v{32+i}, 0")
    for ks in range(14):
        a(f"ds_read_b128 v[16:19], v5 offset:{LMEM+ks*64}")
        a("s_waitcnt lgkmcnt(0)")
        for i in range(3):
            a(f"v_mfma_f32_16x16x32_bf16 v[{32+4*i}:{35+4*i}], a[{(i*14+ks)*4}:{(i*14+ks)*4+3}], v[16:19], v[{32+4*i}:{35+4*i}]")
    a("s_nop 7"); a("s_nop 7")
    a("s_mul_i32 s61, s68, 196608")
    a(f"s_add_u32 s61, s61, {L.QKVM}")
    a("s_mul_i32 s62, s2, 12"); a("s_mul_i32 s63, s60, 3"); a("s_add_u32 s62, s62, s63")
    a("s_lshl_b32 s62, s62, 5")
    a("s_add_u32 s61, s61, s62")
    a("v_mul_u32_u24 v6, 24576, v11")
    a("v_lshl_add_u32 v6, v12, 3, v6")
    a("v_add_u32 v6, s61, v6")
    a("v_cmp_gt_u32 vcc, 8, v11")
    a("s_and_saveexec_b64 s[70:71], vcc")
    for i in range(3):
        a(f"v_cvt_pk_bf16_f32 v{20+2*i}, v{32+4*i}, v{33+4*i}")
        a(f"v_cvt_pk_bf16_f32 v{21+2*i}, v{34+4*i}, v{35+4*i}")
        a(f"global_store_dwordx2 v6, v[{20+2*i}:{21+2*i}], s[{WSP}:{WSP+1}] offset:{32*i} sc0 sc1")
    a("s_mov_b64 exec, s[70:71]")
    post(a, FL1)
    a("s_mul_i32 s61, s68, 786432")
    a("s_lshl_b32 s62, s66, 9")
    a("s_add_u32 s61, s61, s62")
    a("v_lshrrev_b32 v5, 5, v0")
    a("v_and_b32 v6, 31, v0")
    a("v_mul_u32_u24 v7, 24576, v5")
    a("v_lshl_add_u32 v7, v6, 4, v7")
    a("v_add_u32 v7, s61, v7")
    a("v_add_u32 v7, 8192, v7")
    for p in range(4):
        a(f"global_load_dwordx4 v[{64+4*p}:{67+4*p}], v7, s[{WSP}:{WSP+1}] offset:0")
        a(f"v_add_u32 v7, {8*24576}, v7")
    a("v_subrev_u32 v7, {0}, v7".format(32*24576-8192))
    for p in range(4):
        a(f"global_load_dwordx4 v[{80+4*p}:{83+4*p}], v7, s[{WSP}:{WSP+1}] offset:0")
        a(f"v_add_u32 v7, {8*24576}, v7")
    a("s_add_u32 s69, s68, 1")
    poll(a, FL1, "s69")
    a("s_mul_i32 s61, s68, 196608")
    a(f"s_add_u32 s61, s61, {L.QKVM}")
    a("s_add_u32 s61, s61, s62")
    a("v_mul_u32_u24 v7, 24576, v5")
    a("v_lshl_add_u32 v7, v6, 4, v7")
    a("v_add_u32 v7, s61, v7")
    for m in range(3):
        a(f"global_load_dwordx4 v[{96+4*m}:{99+4*m}], v7, s[{WSP}:{WSP+1}] offset:0 sc0 sc1")
        a("v_add_u32 v7, 8192, v7")
    a("s_waitcnt vmcnt(0)")
    a(f"v_mul_u32_u24 v8, {KS}, v5"); a("v_lshl_add_u32 v8, v6, 4, v8")
    a(f"v_mul_u32_u24 v9, {VS}, v5"); a("v_lshl_add_u32 v9, v6, 4, v9"); a(f"v_add_u32 v9, {LV}, v9")
    a(f"ds_write_b128 v8, v[96:99] offset:{LQ}")
    a(f"ds_write_b128 v8, v[100:103] offset:{LK}")
    a(f"ds_write_b128 v9, v[104:107] offset:0")
    for p in range(4):
        a(f"ds_write_b128 v8, v[{64+4*p}:{67+4*p}] offset:{LK+(8+8*p)*KS}")
        a(f"ds_write_b128 v9, v[{80+4*p}:{83+4*p}] offset:{(8+8*p)*VS}")
    a("s_waitcnt lgkmcnt(0)")
    a("s_barrier")
    a(f"v_mul_u32_u24 v5, {KS}, v11"); a("v_lshl_add_u32 v5, v12, 4, v5")
    for i in range(12): a(f"v_mov_b32 v{32+i}, 0")
    for ks in range(8):
        a(f"ds_read_b128 v[16:19], v5 offset:{LQ+ks*64}")
        for t in range(3):
            a(f"ds_read_b128 v[{20+4*t}:{23+4*t}], v5 offset:{LK+t*16*KS+ks*64}")
        a("s_waitcnt lgkmcnt(0)")
        for t in range(3):
            a(f"v_mfma_f32_16x16x32_bf16 v[{32+4*t}:{35+4*t}], v[{20+4*t}:{23+4*t}], v[16:19], v[{32+4*t}:{35+4*t}]")
    a("s_nop 7"); a("s_nop 7")
    a("v_cmp_gt_u32 vcc, 2, v12")
    for i in range(12):
        a(f"v_cvt_pk_bf16_f32 v16, v{32+i}, v{32+i}")
        a(f"v_lshlrev_b32 v{32+i}, 16, v16")
        a(f"v_mul_f32 v{32+i}, 0x3d800000, v{32+i}")
    a("v_mov_b32 v16, 0xf149f2ca")
    for i in range(8,12):
        a(f"v_cndmask_b32 v{32+i}, v16, v{32+i}, vcc")
    a("v_max3_f32 v17, v32, v33, v34")
    for i in range(3,12,2):
        a(f"v_max_f32 v17, v17, v{32+i}")
        if i+1<12: a(f"v_max_f32 v17, v17, v{33+i}")
    xmax(a, "v17", "max")
    a("v_mov_b32 v18, 0")
    a("v_mov_b32 v19, 0x3fb8aa3b")
    for i in range(12):
        a(f"v_sub_f32 v{32+i}, v{32+i}, v17")
        a(f"v_mul_f32 v{32+i}, v19, v{32+i}")
        a(f"v_exp_f32 v{32+i}, v{32+i}")
    a("s_nop 0")
    for i in range(12): a(f"v_add_f32 v18, v18, v{32+i}")
    xmax(a, "v18", "add")
    a("v_rcp_f32 v18, v18")
    a("s_nop 0")
    for i in range(12): a(f"v_mul_f32 v{32+i}, v18, v{32+i}")
    for i in range(6):
        a(f"v_cvt_pk_bf16_f32 v{44+i}, v{32+2*i}, v{33+2*i}")
    a("v_mov_b32 v50, 0"); a("v_mov_b32 v51, 0")
    a("v_and_b32 v6, 3, v11"); a("v_lshrrev_b32 v7, 2, v11")
    a("v_lshl_add_u32 v7, v12, 2, v7")
    a(f"v_mul_u32_u24 v7, {VS}, v7")
    a("v_lshl_add_u32 v7, v6, 3, v7")
    a("s_lshl_b32 s61, s60, 7")
    a("v_add_u32 v7, s61, v7")
    a(f"v_add_u32 v7, {LV}, v7")
    for i in range(16): a(f"v_mov_b32 v{52+i}, 0")
    for u in range(2):
        for mt in range(4):
            a(f"ds_read_b64_tr_b16 v[{16}:{17}], v7 offset:{(32*u)*VS+mt*32}")
            a(f"ds_read_b64_tr_b16 v[{18}:{19}], v7 offset:{(32*u+16)*VS+mt*32}")
            a("s_waitcnt lgkmcnt(0)")
            a(f"v_mfma_f32_16x16x32_bf16 v[{52+4*mt}:{55+4*mt}], v[16:19], v[{44+4*u}:{47+4*u}], v[{52+4*mt}:{55+4*mt}]")
    a("s_nop 7"); a("s_nop 7")
    a(f"v_mul_u32_u24 v5, {OS}, v11"); a("v_lshl_add_u32 v5, v12, 3, v5"); a("v_add_u32 v5, s61, v5")
    for mt in range(4):
        a(f"v_cvt_pk_bf16_f32 v16, v{52+4*mt}, v{53+4*mt}")
        a(f"v_cvt_pk_bf16_f32 v17, v{54+4*mt}, v{55+4*mt}")
        a(f"ds_write_b64 v5, v[16:17] offset:{LO+mt*32}")
        a("s_nop 0")
    a("s_waitcnt lgkmcnt(0)")
    a("s_barrier")
    a(f"v_mul_u32_u24 v5, {OS}, v11"); a("v_lshl_add_u32 v5, v12, 4, v5")
    for i in range(8): a(f"v_mov_b32 v{32+i}, 0")
    for ks in range(8):
        a(f"ds_read_b128 v[16:19], v5 offset:{LO+ks*64}")
        a("s_waitcnt lgkmcnt(0)")
        for i in range(2):
            a(f"v_mfma_f32_16x16x32_bf16 v[{32+4*i}:{35+4*i}], a[{168+(i*8+ks)*4}:{168+(i*8+ks)*4+3}], v[16:19], v[{32+4*i}:{35+4*i}]")
    a("s_nop 7"); a("s_nop 7")
    a("s_add_u32 s61, s68, 1"); a("s_mul_i32 s61, s61, 14336"); a(f"s_add_u32 s61, s61, {L.MEMACC}")
    a("s_mul_i32 s62, s67, 448"); a("s_add_u32 s61, s61, s62")
    a("v_mul_u32_u24 v6, 1792, v11"); a("v_lshl_add_u32 v6, v12, 4, v6"); a("v_add_u32 v6, s61, v6")
    a("v_cmp_gt_u32 vcc, 8, v11")
    a("s_and_saveexec_b64 s[70:71], vcc")
    for i in range(2):
        sk=a.newlabel("cska")
        a(f"s_add_u32 s62, s60, {4*i}")
        a("s_cmp_gt_u32 s62, 6")
        a(f"s_cbranch_scc1 {sk}")
        a("s_lshl_b32 s62, s62, 6")
        a("v_add_u32 v7, s62, v6")
        for j in range(4):
            a(f"global_atomic_add_f32 v7, v{32+4*i+j}, s[{WSP}:{WSP+1}] offset:{4*j}")
        a.label(sk)
    a("s_mov_b64 exec, s[70:71]")
    post(a, FL2)
    a("s_add_u32 s68, s68, 1")
    a(f"s_cmp_lt_u32 s68, {s_last}")
    a(f"s_cbranch_scc1 {loop}")
    a.label(done)
    a("s_endpgm")

def xmax(a, v, op):
    for x in (16,32):
        a(f"v_xor_b32 v14, {x}, v1")
        a("v_lshlrev_b32 v14, 2, v14")
        a(f"ds_bpermute_b32 v15, v14, {v}")
        a("s_waitcnt lgkmcnt(0)")
        a(f"v_{op}_f32 {v}, {v}, v15")

def poll(a, floff, stag:str):
    lp=a.newlabel("poll"); dn=a.newlabel("polld")
    a("s_cmp_lg_u32 s60, 0")
    a(f"s_cbranch_scc1 {dn}")
    a("v_lshlrev_b32 v14, 2, v1")
    a(f"v_add_u32 v14, {floff}, v14")
    a.label(lp)
    a(f"global_load_dword v15, v14, s[{WSP}:{WSP+1}] sc0 sc1")
    a("s_waitcnt vmcnt(0)")
    a(f"v_cmp_le_u32 vcc, {stag}, v15")
    a("s_nop 1")
    a("s_cmp_eq_u64 vcc, exec")
    a(f"s_cbranch_scc1 {dn}")
    a("s_sleep 1")
    a(f"s_branch {lp}")
    a.label(dn)
    a("s_barrier")

def post(a, floff):
    sk=a.newlabel("post")
    a("s_waitcnt vmcnt(0)")
    a("s_barrier")
    a("v_cmp_eq_u32 vcc, 0, v0")
    a("s_and_saveexec_b64 s[70:71], vcc")
    a(f"s_cbranch_execz {sk}")
    a("s_add_u32 s61, s68, 1")
    a("v_mov_b32 v15, s61")
    a("s_lshl_b32 s62, s2, 2")
    a("v_mov_b32 v14, s62")
    a(f"v_add_u32 v14, {floff}, v14")
    a(f"global_store_dword v14, v15, s[{WSP}:{WSP+1}] sc0 sc1")
    a.label(sk)
    a("s_mov_b64 exec, s[70:71]")
```

```python
from asmlib import *
import layout as L

XS = 144
WS_ = 320

def load_ptrs(a):
    a("s_load_dwordx16 s[16:31], s[0:1], 0")
    a("s_load_dwordx16 s[32:47], s[0:1], 64")

def ptr(slot):
    return 16 + 2*slot
WSP = ptr(15)
OUTP = ptr(13)

def gemm_body(a, segs, nwg_total, BM=128, BN=128, tag="g", zero_wgs=0, ntn_log=5):
    done = a.newlabel(tag+"done")
    a(f"s_cmp_ge_u32 s2, {nwg_total+zero_wgs}")
    a(f"s_cbranch_scc1 {done}")
    load_ptrs(a)
    if zero_wgs:
        nz = a.newlabel(tag+"nz")
        a(f"s_cmp_lt_u32 s2, {nwg_total}")
        a(f"s_cbranch_scc1 {nz}")
        a(f"s_sub_u32 s54, s2, {nwg_total}")
        a("s_lshl_b32 s54, s54, 14")
        a(f"s_add_u32 s54, s54, {L.MEMACC}")
        a("v_lshlrev_b32 v1, 4, v0")
        a("v_add_u32 v1, s54, v1")
        a("v_mov_b32 v4, 0"); a("v_mov_b32 v5, 0"); a("v_mov_b32 v6, 0"); a("v_mov_b32 v7, 0")
        a("s_waitcnt lgkmcnt(0)")
        for i in range(4):
            a(f"global_store_dwordx4 v1, v[4:7], s[{WSP}:{WSP+1}] offset:0")
            a("v_add_u32 v1, 4096, v1")
        a(f"s_branch {done}")
        a.label(nz)
    a(f"s_lshr_b32 s54, s2, {4+ntn_log}")
    a(f"s_and_b32 s55, s2, {(16<<ntn_log)-1}")
    a(f"s_and_b32 s56, s55, {(1<<ntn_log)-1}")
    a(f"s_lshr_b32 s57, s55, {ntn_log}")
    a("s_waitcnt lgkmcnt(0)")
    go = a.newlabel(tag+"go")
    for i, s in enumerate(segs):
        nx = a.newlabel(tag+"nx")
        a(f"s_cmp_eq_u32 s54, {i}")
        a(f"s_cbranch_scc0 {nx}")
        a(f"s_add_u32 s4, s{ptr(s['a_slot'])}, {s['a_off']}")
        a(f"s_addc_u32 s5, s{ptr(s['a_slot'])+1}, 0")
        a(f"s_mov_b32 s6, {s['a_bytes']}")
        a(f"s_add_u32 s8, s{ptr(s['b_slot'])}, {s['b_off']}")
        a(f"s_addc_u32 s9, s{ptr(s['b_slot'])+1}, 0")
        a(f"s_mov_b32 s10, {s['b_bytes']}")
        a(f"s_add_u32 s12, s{ptr(s['c_slot'])}, {s['c_off']}")
        a(f"s_addc_u32 s13, s{ptr(s['c_slot'])+1}, 0")
        a(f"s_mov_b32 s14, {s['c_bytes']}")
        a(f"s_mov_b32 s48, {s['lda']*2}")
        a(f"s_mov_b32 s49, {s['ldb']*2}")
        a(f"s_mov_b32 s50, {s['ldc']*2}")
        a(f"s_mov_b32 s51, {s['K']//64}")
        a(f"s_branch {go}")
        a.label(nx)
    a(f"s_branch {done}")
    a.label(go)
    a("s_mov_b32 s7, 0x00020000")
    a("s_mov_b32 s11, 0x00020000")
    a("s_mov_b32 s15, 0x00020000")
    a("v_lshrrev_b32 v1, 3, v0")
    a("v_and_b32 v2, 7, v0")
    a("s_lshl_b32 s58, s57, 7")
    a("v_add_u32 v1, s58, v1")
    a("v_mul_lo_u32 v1, v1, s48")
    a("v_lshl_add_u32 v4, v2, 4, v1")
    a("s_lshl_b32 s59, s48, 5")
    a("v_add_u32 v5, s59, v4")
    a("v_add_u32 v6, s59, v5")
    a("v_add_u32 v7, s59, v6")
    a("v_lshrrev_b32 v1, 3, v0")
    a(f"v_mul_u32_u24 v1, {XS}, v1")
    a("v_lshl_add_u32 v12, v2, 4, v1")
    a("v_lshrrev_b32 v1, 4, v0")
    a("v_and_b32 v2, 15, v0")
    a("v_mul_lo_u32 v3, v1, s49")
    a("v_lshl_add_u32 v3, v2, 4, v3")
    a("s_lshl_b32 s59, s56, 8")
    a("v_add_u32 v8, s59, v3")
    a("s_lshl_b32 s59, s49, 4")
    a("v_add_u32 v9, s59, v8")
    a("v_add_u32 v10, s59, v9")
    a("v_add_u32 v11, s59, v10")
    XL = 0; WL = 128*XS
    BUF = 128*XS + 64*WS_
    a(f"v_mul_u32_u24 v1, {WS_}, v1")
    a("v_lshl_add_u32 v13, v2, 4, v1")
    a(f"v_add_u32 v13, {WL}, v13")
    a("v_lshrrev_b32 v1, 6, v0")
    a("v_and_b32 v2, 63, v0")
    a("v_lshrrev_b32 v3, 1, v1")
    a("v_and_b32 v1, 1, v1")
    a("v_and_b32 v14, 31, v2")
    a("v_lshl_add_u32 v14, v3, 6, v14")
    a(f"v_mul_u32_u24 v14, {XS}, v14")
    a("v_lshrrev_b32 v15, 5, v2")
    a("v_lshl_add_u32 v14, v15, 4, v14")
    a("v_and_b32 v16, 15, v2")
    a("v_lshrrev_b32 v17, 2, v16")
    a("v_lshl_add_u32 v17, v15, 3, v17")
    a(f"v_mul_u32_u24 v17, {WS_}, v17")
    a("v_and_b32 v16, 3, v16")
    a("v_lshlrev_b32 v16, 3, v16")
    a("v_add_u32 v17, v17, v16")
    a("v_bfe_u32 v16, v2, 4, 1")
    a("v_lshl_add_u32 v17, v16, 5, v17")
    a("v_lshl_add_u32 v17, v1, 7, v17")
    a(f"v_add_u32 v17, {WL}, v17")
    a("v_and_b32 v18, 31, v2")
    a("v_lshl_add_u32 v18, v3, 6, v18")
    a("v_add_u32 v18, s58, v18")
    a("v_mul_lo_u32 v18, v18, s50")
    a("v_lshl_add_u32 v18, v15, 3, v18")
    a("v_lshl_add_u32 v18, v1, 7, v18")
    a("s_lshl_b32 s59, s56, 8")
    a("v_add_u32 v18, s59, v18")
    for i in range(64,128):
        a(f"v_mov_b32 v{i}, 0")
    a("s_mov_b32 s52, 0")
    a("s_mov_b32 s53, 0")
    a("s_lshl_b32 s60, s49, 6")
    def gloads():
        for p in range(4):
            a(f"buffer_load_dwordx4 v[{32+4*p}:{35+4*p}], v{4+p}, s[4:7], s52 offen")
        for p in range(4):
            a(f"buffer_load_dwordx4 v[{48+4*p}:{51+4*p}], v{8+p}, s[8:11], s53 offen")
        a("s_add_u32 s52, s52, 128")
        a("s_add_u32 s53, s53, s60")
    def lwrites(buf):
        for p in range(4):
            a(f"ds_write_b128 v12, v[{32+4*p}:{35+4*p}] offset:{buf*BUF + p*32*XS}")
        for p in range(4):
            a(f"ds_write_b128 v13, v[{48+4*p}:{51+4*p}] offset:{buf*BUF + p*16*WS_}")
    def freads(buf, ks, fb):
        b = 128+16*fb
        for nt in range(2):
            for j in range(2):
                a(f"ds_read_b64_tr_b16 v[{b+nt*4+j*2}:{b+nt*4+j*2+1}], v17 offset:{buf*BUF + (ks*16+4*j)*WS_ + nt*64}")
        for mt in range(2):
            a(f"ds_read_b128 v[{b+8+mt*4}:{b+8+mt*4+3}], v14 offset:{buf*BUF + mt*32*XS + ks*32}")
    def mfmas(fb):
        b = 128+16*fb
        for nt in range(2):
            for mt in range(2):
                acc = 64 + (nt*2+mt)*16
                a(f"v_mfma_f32_32x32x16_bf16 v[{acc}:{acc+15}], v[{b+nt*4}:{b+nt*4+3}], v[{b+8+mt*4}:{b+8+mt*4+3}], v[{acc}:{acc+15}]")
    gloads()
    a("s_waitcnt vmcnt(0)")
    lwrites(0)
    a("s_waitcnt lgkmcnt(0)")
    a("s_barrier")
    loop = a.newlabel(tag+"loop")
    a.label(loop)
    for buf in range(2):
        a("s_sub_u32 s51, s51, 1")
        a("s_cmp_eq_u32 s51, 0")
        nol = a.newlabel(tag+"nol")
        a(f"s_cbranch_scc1 {nol}")
        gloads()
        a.label(nol)
        freads(buf, 0, 0)
        for ks in range(4):
            if ks < 3:
                freads(buf, ks+1, (ks+1)%2)
                a("s_waitcnt lgkmcnt(6)")
            else:
                a("s_waitcnt lgkmcnt(0)")
            mfmas(ks%2)
        a("s_cmp_eq_u32 s51, 0")
        a(f"s_cbranch_scc1 {tag}_epi")
        a("s_waitcnt vmcnt(0)")
        lwrites(1-buf)
        a("s_waitcnt lgkmcnt(0)")
        a("s_barrier")
    a(f"s_branch {loop}")
    a.label(f"{tag}_epi")
    a("s_nop 15")
    if ntn_log==2:
        a("v_readfirstlane_b32 s59, v1")
        a("s_nop 3")
        a("s_lshl_b32 s58, s56, 1"); a("s_add_u32 s58, s58, s59")
        a("s_cmp_ge_u32 s58, 7"); a(f"s_cbranch_scc1 {done}")
    for nt in range(2):
        for mt in range(2):
            acc = 64 + (nt*2+mt)*16
            for q in range(4):
                r = acc+4*q
                a(f"v_cvt_pk_bf16_f32 v20, v{r}, v{r+1}")
                a(f"v_cvt_pk_bf16_f32 v21, v{r+2}, v{r+3}")
                if mt == 0:
                    a(f"buffer_store_dwordx2 v[20:21], v18, s[12:15], 0 offen offset:{(nt*32+8*q)*2}")
                else:
                    a("s_lshl_b32 s59, s50, 5")
                    a(f"buffer_store_dwordx2 v[20:21], v18, s[12:15], s59 offen offset:{(nt*32+8*q)*2}")
                a("s_nop 1")
    a.label(done)
    a("s_endpgm")

GEMM_LDS = 2*(128*XS+64*WS_)
```

```python
QKVA = 0
QB   = QKVA + 2048*12288*2
KVB  = QB + 2048*4096*2
OB   = KVB + 2048*8192*2
OA   = OB + 2048*4096*2
QKVM = OA + 2048*4096*2
MEMACC = QKVM + 64*8*12288*2
FLAGS = MEMACC + 65*8*448*4
FLAGS = (FLAGS + 4095)//4096*4096
WS_END = FLAGS + 65536
assert WS_END <= 268435456
```

```python
import sys
from asmlib import *
import layout as L
import gemm

OUT = 'concat_heads__memory_aug_recurrent_mem_tr__compressed_kv_cla__prompt.s'
header = open('concat_heads__memory_aug_recurrent_mem_tr__compressed_kv_cla__prompt.s.ref').read().split('\n')
hdr = [l for l in header if l.startswith(';') and '@launch' not in l and 'Override' not in l and 'grid=ceil' not in l]

launches = []
kernels = []
body = Asm()

def kernel(name, grid, block, lds, vgpr, sgpr, fn, accum=None):
    launches.append((name, grid, block, lds))
    if name in [k[0] for k in kernels]:
        return
    kernels.append((name, vgpr, sgpr, accum))
    body.raw(f".globl {name}")
    body.raw(".p2align 8")
    body.raw(f".type {name},@function")
    body.label(name)
    fn(body)

WSB = 268435456
segs1 = [
 dict(a_slot=0,a_off=0,a_bytes=2048*448*2,lda=448,b_slot=2,b_off=0,b_bytes=448*4096*2,ldb=4096,c_slot=15,c_off=L.QKVA,c_bytes=2048*12288*2,ldc=12288,K=448),
 dict(a_slot=0,a_off=0,a_bytes=2048*448*2,lda=448,b_slot=3,b_off=0,b_bytes=448*4096*2,ldb=4096,c_slot=15,c_off=L.QKVA+8192,c_bytes=2048*12288*2-8192,ldc=12288,K=448),
 dict(a_slot=0,a_off=0,a_bytes=2048*448*2,lda=448,b_slot=4,b_off=0,b_bytes=448*4096*2,ldb=4096,c_slot=15,c_off=L.QKVA+16384,c_bytes=2048*12288*2-16384,ldc=12288,K=448),
 dict(a_slot=7,a_off=0,a_bytes=2048*448*2,lda=448,b_slot=9,b_off=0,b_bytes=448*4096*2,ldb=4096,c_slot=15,c_off=L.QB,c_bytes=2048*4096*2,ldc=4096,K=448),
 dict(a_slot=8,a_off=0,a_bytes=2048*1024*2,lda=1024,b_slot=10,b_off=0,b_bytes=1024*4096*2,ldb=4096,c_slot=15,c_off=L.KVB,c_bytes=2048*8192*2,ldc=8192,K=1024),
 dict(a_slot=8,a_off=0,a_bytes=2048*1024*2,lda=1024,b_slot=11,b_off=0,b_bytes=1024*4096*2,ldb=4096,c_slot=15,c_off=L.KVB+8192,c_bytes=2048*8192*2-8192,ldc=8192,K=1024),
]
kernel("proj_kernel", (3072+64,1,1), (256,1,1), gemm.GEMM_LDS, 160, 64, lambda a: gemm.gemm_body(a, segs1, 3072, tag="pj", zero_wgs=64))
import chain
kernel("chain_kernel", (64,1,1), (256,1,1), chain.CH_LDS, 512, 80, lambda a: chain.chain_body(a, 0, 64), accum=256)

import attn
kernel("attnb_kernel", (256,1,1), (256,1,1), attn.AT_LDS, 320, 80, attn.attn_b_body, accum=256)
kernel("attna_kernel", (512,1,1), (128,1,1), 2*attn.AT_LDS, 320, 80, attn.attn_a_body, accum=256)
segs2 = [
 dict(a_slot=15,a_off=L.OA,a_bytes=2048*4096*2,lda=4096,b_slot=5,b_off=0,b_bytes=4096*448*2,ldb=448,c_slot=13,c_off=0,c_bytes=2048*896*2,ldc=896,K=4096),
 dict(a_slot=15,a_off=L.OB,a_bytes=2048*4096*2,lda=4096,b_slot=12,b_off=0,b_bytes=4096*448*2,ldb=448,c_slot=13,c_off=896,c_bytes=2048*896*2-896,ldc=896,K=4096),
]
kernel("oproj_kernel", (128,1,1), (256,1,1), gemm.GEMM_LDS, 160, 64, lambda a: gemm.gemm_body(a, segs2, 128, tag="op", ntn_log=2))
out = []
out += hdr
for (n,g,b,l) in launches:
    out.append(f"; @launch kernel={n} grid=({g[0]},{g[1]},{g[2]}) block=({b[0]},{b[1]},{b[2]}) lds={l}")
out.append('.amdgcn_target "amdgcn-amd-amdhsa--gfx950"')
out.append('.text')
out.append(body.text())
out.append('.section .rodata,"a"')
for (n,v,s,acc) in kernels:
    out.append('.p2align 6')
    out.append(f'.amdhsa_kernel {n}')
    out.append(f'  .amdhsa_next_free_vgpr {v}')
    out.append(f'  .amdhsa_next_free_sgpr {s}')
    out.append(f'  .amdhsa_accum_offset {acc if acc else (v+3)//4*4}')
    out.append('  .amdhsa_group_segment_fixed_size 0')
    out.append('  .amdhsa_kernarg_size 128')
    out.append('  .amdhsa_user_sgpr_count 2')
    out.append('  .amdhsa_user_sgpr_kernarg_segment_ptr 1')
    out.append('  .amdhsa_system_sgpr_workgroup_id_x 1')
    out.append('.end_amdhsa_kernel')
open(OUT,'w').write("\n".join(out)+"\n")
print("wrote", OUT, len("\n".join(out)))
```

```python
from asmlib import *
import layout as L
from gemm import load_ptrs, ptr, WSP

MEMS=912; QS=528; KS=528; VS=576; OS=528
LO=0; LQ=LO+16*OS; LMEM=LQ+16*QS; LK=LMEM+16*MEMS; LV=LK+64*KS; CH_LDS=LV+64*VS
FL1=L.FLAGS; FL2=L.FLAGS+256

def chain_body(a, s_first, s_last, nwg=64):
    done=a.newlabel("cdone")
    a(f"s_cmp_ge_u32 s2, {nwg}")
    a(f"s_cbranch_scc1 {done}")
    load_ptrs(a)
    a("v_and_b32 v1, 63, v0")
    a("v_lshrrev_b32 v2, 6, v0")
    a("s_nop 0")
    a("v_readfirstlane_b32 s60, v2")
    a("s_waitcnt lgkmcnt(0)")
    a("v_lshrrev_b32 v3, 1, v1")
    a("v_and_b32 v4, 1, v1")
    a("v_lshlrev_b32 v5, 13, v3")
    a("v_lshl_add_u32 v5, v4, 4, v5")
    a("v_mul_u32_u24 v6, 14336, v2")
    a("v_lshl_add_u32 v7, v3, 5, v6")
    a("v_lshl_add_u32 v7, v4, 4, v7")
    a("v_and_b32 v8, 15, v1")
    a("v_lshrrev_b32 v9, 4, v1")
    a("v_lshrrev_b32 v10, 2, v8")
    a("v_lshl_add_u32 v10, v9, 3, v10")
    a("v_lshlrev_b32 v10, 5, v10")
    a("v_and_b32 v8, 3, v8")
    a("v_lshl_add_u32 v10, v8, 3, v10")
    a("v_add_u32 v10, v10, v6")
    for i in range(3):
        a(f"s_mul_i32 s61, s2, 12")
        a(f"s_mul_i32 s62, s60, 3")
        a(f"s_add_u32 s61, s61, s62")
        a(f"s_add_u32 s61, s61, {i}")
        a("s_lshr_b32 s62, s61, 8")
        a("s_and_b32 s61, s61, 255")
        a("s_lshl_b32 s61, s61, 5")
        a("s_lshl_b32 s62, s62, 1")
        a("s_add_u32 s62, s62, 20")
        a("s_cmp_eq_u32 s62, 20"); a("s_cselect_b32 s64, s20, s22"); a("s_cselect_b32 s65, s21, s23")
        a("s_cmp_eq_u32 s62, 24"); a("s_cselect_b32 s64, s24, s64"); a("s_cselect_b32 s65, s25, s65")
        a("s_add_u32 s64, s64, s61"); a("s_addc_u32 s65, s65, 0")
        for r in range(14):
            a(f"global_load_dwordx4 v[{16+4*r}:{19+4*r}], v5, s[64:65] offset:0")
            a(f"v_add_u32 v5, 0x40000, v5")
        a("v_subrev_u32 v5, 0x380000, v5")
        a("s_waitcnt vmcnt(0)")
        for r in range(14):
            a(f"ds_write_b128 v7, v[{16+4*r}:{19+4*r}] offset:{r*1024}")
        a("s_waitcnt lgkmcnt(0)")
        for ks in range(14):
            for j in range(2):
                a(f"ds_read_b64_tr_b16 v[{80+2*j}:{81+2*j}], v10 offset:{(ks*32+4*j)*32}")
            a("s_waitcnt lgkmcnt(0)")
            for j in range(4):
                a(f"v_accvgpr_write_b32 a{(i*14+ks)*4+j}, v{80+j}")
    a("s_lshr_b32 s66, s2, 2")
    a("s_and_b32 s67, s2, 3")
    for i in range(2):
        a(f"s_add_u32 s61, s60, {4*i}")
        a("s_min_u32 s61, s61, 6")
        a("s_lshl_b32 s61, s61, 5")
        a("s_mul_i32 s62, s67, 224")
        a("s_add_u32 s61, s61, s62")
        a("s_mul_i32 s62, s66, 229376")
        a("s_add_u32 s61, s61, s62")
        a(f"s_add_u32 s64, s{ptr(5)}, s61"); a(f"s_addc_u32 s65, s{ptr(5)+1}, 0")
        a("v_mul_u32_u24 v5, 896, v3")
        a("v_lshl_add_u32 v5, v4, 4, v5")
        for r in range(8):
            a(f"global_load_dwordx4 v[{16+4*r}:{19+4*r}], v5, s[64:65] offset:0")
            a(f"v_add_u32 v5, {32*896}, v5")
        a("s_waitcnt vmcnt(0)")
        for r in range(8):
            a(f"ds_write_b128 v7, v[{16+4*r}:{19+4*r}] offset:{r*1024}")
        a("s_waitcnt lgkmcnt(0)")
        for ks in range(8):
            for j in range(2):
                a(f"ds_read_b64_tr_b16 v[{80+2*j}:{81+2*j}], v10 offset:{(ks*32+4*j)*32}")
            a("s_waitcnt lgkmcnt(0)")
            for j in range(4):
                a(f"v_accvgpr_write_b32 a{168+(i*8+ks)*4+j}, v{80+j}")
    a("s_barrier")
    a("v_mov_b32 v16, 0"); a("v_mov_b32 v17, 0"); a("v_mov_b32 v18, 0"); a("v_mov_b32 v19, 0")
    a("v_lshlrev_b32 v5, 4, v0")
    nz=(CH_LDS+4095)//4096
    for r in range(nz):
        a(f"ds_write_b128 v5, v[16:19]")
        a("v_add_u32 v5, 4096, v5")
    a("s_waitcnt lgkmcnt(0)")
    a("s_barrier")
    a("v_and_b32 v11, 15, v1")
    a("v_lshrrev_b32 v12, 4, v1")
    a("v_mov_b32 v13, 0")
    a(f"s_mov_b32 s68, {s_first}")
    loop=a.newlabel("cloop")
    a.label(loop)
    skipw=a.newlabel("cskipw")
    a("s_cmp_eq_u32 s68, 0")
    a(f"s_cbranch_scc1 {skipw}")
    poll(a, FL2, "s68")
    a.label(skipw)
    isz=a.newlabel("cmem0"); mdone=a.newlabel("cmemd")
    a("s_cmp_eq_u32 s68, 0")
    a(f"s_cbranch_scc1 {isz}")
    a("s_mul_i32 s61, s68, 14336")
    a(f"s_add_u32 s61, s61, {L.MEMACC}")
    for i in range(4):
        a(f"v_add_u32 v5, {256*i}, v0")
        a("v_cmp_gt_u32 vcc, 896, v5")
        a("s_and_saveexec_b64 s[70:71], vcc")
        a("v_lshlrev_b32 v6, 4, v5")
        a("v_add_u32 v6, s61, v6")
        a(f"global_load_dwordx4 v[{64+4*i}:{67+4*i}], v6, s[{WSP}:{WSP+1}] sc0 sc1")
        a("s_mov_b64 exec, s[70:71]")
    for i in range(4):
        a(f"v_add_u32 v5, {256*i}, v0")
        a("v_cmp_gt_u32 vcc, 896, v5")
        a("s_and_saveexec_b64 s[70:71], vcc")
        a("v_mul_u32_u24 v7, 0x4925, v5")
        a("v_lshrrev_b32 v7, 21, v7")
        a("v_mul_u32_u24 v8, 112, v7")
        a("v_sub_u32 v8, v5, v8")
        a(f"v_mul_u32_u24 v7, {MEMS}, v7")
        a("v_lshl_add_u32 v7, v8, 3, v7")
        a(f"s_waitcnt vmcnt({3-i})")
        a(f"v_cvt_pk_bf16_f32 v16, v{64+4*i}, v{65+4*i}")
        a(f"v_cvt_pk_bf16_f32 v17, v{66+4*i}, v{67+4*i}")
        a(f"ds_write_b64 v7, v[16:17] offset:{LMEM}")
        a("s_mov_b64 exec, s[70:71]")
    a(f"s_branch {mdone}")
    a.label(isz)
    for i in range(2):
        a(f"v_add_u32 v5, {256*i}, v0")
        a("v_cmp_gt_u32 vcc, 448, v5")
        a("s_and_saveexec_b64 s[70:71], vcc")
        a("v_lshlrev_b32 v6, 4, v5")
        a(f"global_load_dwordx4 v[16:19], v6, s[{ptr(1)}:{ptr(1)+1}]")
        a("v_mul_u32_u24 v7, 0x2493, v5")
        a("v_lshrrev_b32 v7, 19, v7")
        a("v_mul_u32_u24 v8, 56, v7")
        a("v_sub_u32 v8, v5, v8")
        a(f"v_mul_u32_u24 v7, {MEMS}, v7")
        a("v_lshl_add_u32 v7, v8, 4, v7")
        a("s_waitcnt vmcnt(0)")
        a(f"ds_write_b128 v7, v[16:19] offset:{LMEM}")
        a("s_mov_b64 exec, s[70:71]")
    a.label(mdone)
    a("s_waitcnt lgkmcnt(0)")
    a("s_barrier")
    a(f"v_mul_u32_u24 v5, {MEMS}, v11")
    a("v_lshl_add_u32 v5, v12, 4, v5")
    for i in range(12): a(f"v_mov_b32 v{32+i}, 0")
    for ks in range(14):
        a(f"ds_read_b128 v[{64+4*ks}:{67+4*ks}], v5 offset:{LMEM+ks*64}")
    for ks in range(14):
        a(f"s_waitcnt lgkmcnt({13-ks})")
        for i in range(3):
            a(f"v_mfma_f32_16x16x32_bf16 v[{32+4*i}:{35+4*i}], a[{(i*14+ks)*4}:{(i*14+ks)*4+3}], v[{64+4*ks}:{67+4*ks}], v[{32+4*i}:{35+4*i}]")
    a("s_nop 7"); a("s_nop 7")
    a("s_mul_i32 s61, s68, 196608")
    a(f"s_add_u32 s61, s61, {L.QKVM}")
    a("s_mul_i32 s62, s2, 12"); a("s_mul_i32 s63, s60, 3"); a("s_add_u32 s62, s62, s63")
    a("s_lshl_b32 s62, s62, 5")
    a("s_add_u32 s61, s61, s62")
    a("v_mul_u32_u24 v6, 24576, v11")
    a("v_lshl_add_u32 v6, v12, 3, v6")
    a("v_add_u32 v6, s61, v6")
    a("v_cmp_gt_u32 vcc, 8, v11")
    a("s_and_saveexec_b64 s[70:71], vcc")
    for i in range(3):
        a(f"v_cvt_pk_bf16_f32 v{20+2*i}, v{32+4*i}, v{33+4*i}")
        a(f"v_cvt_pk_bf16_f32 v{21+2*i}, v{34+4*i}, v{35+4*i}")
        a(f"global_store_dwordx2 v6, v[{20+2*i}:{21+2*i}], s[{WSP}:{WSP+1}] offset:{32*i} sc0 sc1")
    a("s_mov_b64 exec, s[70:71]")
    post(a, FL1)
    a("s_mul_i32 s61, s68, 786432")
    a("s_lshl_b32 s62, s66, 9")
    a("s_add_u32 s61, s61, s62")
    a("v_lshrrev_b32 v5, 5, v0")
    a("v_and_b32 v6, 31, v0")
    a("v_mul_u32_u24 v7, 24576, v5")
    a("v_lshl_add_u32 v7, v6, 4, v7")
    a("v_add_u32 v7, s61, v7")
    a("v_add_u32 v7, 8192, v7")
    for p in range(4):
        a(f"global_load_dwordx4 v[{64+4*p}:{67+4*p}], v7, s[{WSP}:{WSP+1}] offset:0")
        a(f"v_add_u32 v7, {8*24576}, v7")
    a("v_subrev_u32 v7, {0}, v7".format(32*24576-8192))
    for p in range(4):
        a(f"global_load_dwordx4 v[{80+4*p}:{83+4*p}], v7, s[{WSP}:{WSP+1}] offset:0")
        a(f"v_add_u32 v7, {8*24576}, v7")
    a("s_add_u32 s69, s68, 1")
    poll(a, FL1, "s69")
    a("s_mul_i32 s61, s68, 196608")
    a(f"s_add_u32 s61, s61, {L.QKVM}")
    a("s_add_u32 s61, s61, s62")
    a("v_mul_u32_u24 v7, 24576, v5")
    a("v_lshl_add_u32 v7, v6, 4, v7")
    a("v_add_u32 v7, s61, v7")
    for m in range(3):
        a(f"global_load_dwordx4 v[{96+4*m}:{99+4*m}], v7, s[{WSP}:{WSP+1}] offset:0 sc0 sc1")
        a("v_add_u32 v7, 8192, v7")
    a("s_waitcnt vmcnt(0)")
    a(f"v_mul_u32_u24 v8, {KS}, v5"); a("v_lshl_add_u32 v8, v6, 4, v8")
    a(f"v_mul_u32_u24 v9, {VS}, v5"); a("v_lshl_add_u32 v9, v6, 4, v9"); a(f"v_add_u32 v9, {LV}, v9")
    a(f"ds_write_b128 v8, v[96:99] offset:{LQ}")
    a(f"ds_write_b128 v8, v[100:103] offset:{LK}")
    a(f"ds_write_b128 v9, v[104:107] offset:0")
    for p in range(4):
        a(f"ds_write_b128 v8, v[{64+4*p}:{67+4*p}] offset:{LK+(8+8*p)*KS}")
        a(f"ds_write_b128 v9, v[{80+4*p}:{83+4*p}] offset:{(8+8*p)*VS}")
    a("s_waitcnt lgkmcnt(0)")
    a("s_barrier")
    a(f"v_mul_u32_u24 v5, {KS}, v11"); a("v_lshl_add_u32 v5, v12, 4, v5")
    for i in range(12): a(f"v_mov_b32 v{32+i}, 0")
    for ks in range(8):
        a(f"ds_read_b128 v[16:19], v5 offset:{LQ+ks*64}")
        for t in range(3):
            a(f"ds_read_b128 v[{20+4*t}:{23+4*t}], v5 offset:{LK+t*16*KS+ks*64}")
        a("s_waitcnt lgkmcnt(0)")
        for t in range(3):
            a(f"v_mfma_f32_16x16x32_bf16 v[{32+4*t}:{35+4*t}], v[{20+4*t}:{23+4*t}], v[16:19], v[{32+4*t}:{35+4*t}]")
    a("s_nop 7"); a("s_nop 7")
    a("v_cmp_gt_u32 vcc, 2, v12")
    for i in range(12):
        a(f"v_cvt_pk_bf16_f32 v16, v{32+i}, v{32+i}")
        a(f"v_lshlrev_b32 v{32+i}, 16, v16")
        a(f"v_mul_f32 v{32+i}, 0x3d800000, v{32+i}")
    a("v_mov_b32 v16, 0xf149f2ca")
    for i in range(8,12):
        a(f"v_cndmask_b32 v{32+i}, v16, v{32+i}, vcc")
    a("v_max3_f32 v17, v32, v33, v34")
    for i in range(3,12,2):
        a(f"v_max_f32 v17, v17, v{32+i}")
        if i+1<12: a(f"v_max_f32 v17, v17, v{33+i}")
    xmax(a, "v17", "max")
    a("v_mov_b32 v18, 0")
    a("v_mov_b32 v19, 0x3fb8aa3b")
    for i in range(12):
        a(f"v_sub_f32 v{32+i}, v{32+i}, v17")
        a(f"v_mul_f32 v{32+i}, v19, v{32+i}")
        a(f"v_exp_f32 v{32+i}, v{32+i}")
    a("s_nop 0")
    for i in range(12): a(f"v_add_f32 v18, v18, v{32+i}")
    xmax(a, "v18", "add")
    a("v_rcp_f32 v18, v18")
    a("s_nop 0")
    for i in range(12): a(f"v_mul_f32 v{32+i}, v18, v{32+i}")
    for i in range(6):
        a(f"v_cvt_pk_bf16_f32 v{44+i}, v{32+2*i}, v{33+2*i}")
    a("v_mov_b32 v50, 0"); a("v_mov_b32 v51, 0")
    a("v_and_b32 v6, 3, v11"); a("v_lshrrev_b32 v7, 2, v11")
    a("v_lshl_add_u32 v7, v12, 2, v7")
    a(f"v_mul_u32_u24 v7, {VS}, v7")
    a("v_lshl_add_u32 v7, v6, 3, v7")
    a("s_lshl_b32 s61, s60, 7")
    a("v_add_u32 v7, s61, v7")
    a(f"v_add_u32 v7, {LV}, v7")
    for i in range(16): a(f"v_mov_b32 v{52+i}, 0")
    for u in range(2):
        for mt in range(4):
            a(f"ds_read_b64_tr_b16 v[{16}:{17}], v7 offset:{(32*u)*VS+mt*32}")
            a(f"ds_read_b64_tr_b16 v[{18}:{19}], v7 offset:{(32*u+16)*VS+mt*32}")
            a("s_waitcnt lgkmcnt(0)")
            a(f"v_mfma_f32_16x16x32_bf16 v[{52+4*mt}:{55+4*mt}], v[16:19], v[{44+4*u}:{47+4*u}], v[{52+4*mt}:{55+4*mt}]")
    a("s_nop 7"); a("s_nop 7")
    a(f"v_mul_u32_u24 v5, {OS}, v11"); a("v_lshl_add_u32 v5, v12, 3, v5"); a("v_add_u32 v5, s61, v5")
    for mt in range(4):
        a(f"v_cvt_pk_bf16_f32 v16, v{52+4*mt}, v{53+4*mt}")
        a(f"v_cvt_pk_bf16_f32 v17, v{54+4*mt}, v{55+4*mt}")
        a(f"ds_write_b64 v5, v[16:17] offset:{LO+mt*32}")
        a("s_nop 0")
    a("s_waitcnt lgkmcnt(0)")
    a("s_barrier")
    a(f"v_mul_u32_u24 v5, {OS}, v11"); a("v_lshl_add_u32 v5, v12, 4, v5")
    for i in range(8): a(f"v_mov_b32 v{32+i}, 0")
    for ks in range(8):
        a(f"ds_read_b128 v[16:19], v5 offset:{LO+ks*64}")
        a("s_waitcnt lgkmcnt(0)")
        for i in range(2):
            a(f"v_mfma_f32_16x16x32_bf16 v[{32+4*i}:{35+4*i}], a[{168+(i*8+ks)*4}:{168+(i*8+ks)*4+3}], v[16:19], v[{32+4*i}:{35+4*i}]")
    a("s_nop 7"); a("s_nop 7")
    a("s_add_u32 s61, s68, 1"); a("s_mul_i32 s61, s61, 14336"); a(f"s_add_u32 s61, s61, {L.MEMACC}")
    a("s_mul_i32 s62, s67, 448"); a("s_add_u32 s61, s61, s62")
    a("v_mul_u32_u24 v6, 1792, v11"); a("v_lshl_add_u32 v6, v12, 4, v6"); a("v_add_u32 v6, s61, v6")
    a("v_cmp_gt_u32 vcc, 8, v11")
    a("s_and_saveexec_b64 s[70:71], vcc")
    for i in range(2):
        sk=a.newlabel("cska")
        a(f"s_add_u32 s62, s60, {4*i}")
        a("s_cmp_gt_u32 s62, 6")
        a(f"s_cbranch_scc1 {sk}")
        a("s_lshl_b32 s62, s62, 6")
        a("v_add_u32 v7, s62, v6")
        for j in range(4):
            a(f"global_atomic_add_f32 v7, v{32+4*i+j}, s[{WSP}:{WSP+1}] offset:{4*j}")
        a.label(sk)
    a("s_mov_b64 exec, s[70:71]")
    post(a, FL2)
    a("s_add_u32 s68, s68, 1")
    a(f"s_cmp_lt_u32 s68, {s_last}")
    a(f"s_cbranch_scc1 {loop}")
    a.label(done)
    a("s_endpgm")

def xmax(a, v, op):
    for x in (16,32):
        a(f"v_xor_b32 v14, {x}, v1")
        a("v_lshlrev_b32 v14, 2, v14")
        a(f"ds_bpermute_b32 v15, v14, {v}")
        a("s_waitcnt lgkmcnt(0)")
        a(f"v_{op}_f32 {v}, {v}, v15")

def poll(a, floff, stag:str):
    lp=a.newlabel("poll"); dn=a.newlabel("polld")
    a("s_cmp_lg_u32 s60, 0")
    a(f"s_cbranch_scc1 {dn}")
    a("v_lshlrev_b32 v14, 2, v1")
    a(f"v_add_u32 v14, {floff}, v14")
    a.label(lp)
    a(f"global_load_dword v15, v14, s[{WSP}:{WSP+1}] sc0 sc1")
    a("s_waitcnt vmcnt(0)")
    a(f"v_cmp_le_u32 vcc, {stag}, v15")
    a("s_nop 1")
    a("s_cmp_eq_u64 vcc, exec")
    a(f"s_cbranch_scc1 {dn}")
    a(f"s_branch {lp}")
    a.label(dn)
    a("s_barrier")

def post(a, floff):
    sk=a.newlabel("post")
    a("s_waitcnt vmcnt(0)")
    a("s_barrier")
    a("v_cmp_eq_u32 vcc, 0, v0")
    a("s_and_saveexec_b64 s[70:71], vcc")
    a(f"s_cbranch_execz {sk}")
    a("s_add_u32 s61, s68, 1")
    a("v_mov_b32 v15, s61")
    a("s_lshl_b32 s62, s2, 2")
    a("v_mov_b32 v14, s62")
    a(f"v_add_u32 v14, {floff}, v14")
    a(f"global_store_dword v14, v15, s[{WSP}:{WSP+1}] sc0 sc1")
    a.label(sk)
    a("s_mov_b64 exec, s[70:71]")
```

```python
import sys
from asmlib import *
import layout as L
import gemm

OUT = 'concat_heads__memory_aug_recurrent_mem_tr__compressed_kv_cla__prompt.s'
header = open('concat_heads__memory_aug_recurrent_mem_tr__compressed_kv_cla__prompt.s.ref').read().split('\n')
hdr = [l for l in header if l.startswith(';') and '@launch' not in l and 'Override' not in l and 'grid=ceil' not in l]

launches = []
kernels = []
body = Asm()

def kernel(name, grid, block, lds, vgpr, sgpr, fn, accum=None):
    launches.append((name, grid, block, lds))
    if name in [k[0] for k in kernels]:
        return
    kernels.append((name, vgpr, sgpr, accum))
    body.raw(f".globl {name}")
    body.raw(".p2align 8")
    body.raw(f".type {name},@function")
    body.label(name)
    fn(body)

WSB = 268435456
segs1 = [
 dict(a_slot=0,a_off=0,a_bytes=2048*448*2,lda=448,b_slot=2,b_off=0,b_bytes=448*4096*2,ldb=4096,c_slot=15,c_off=L.QKVA,c_bytes=2048*12288*2,ldc=12288,K=448),
 dict(a_slot=0,a_off=0,a_bytes=2048*448*2,lda=448,b_slot=3,b_off=0,b_bytes=448*4096*2,ldb=4096,c_slot=15,c_off=L.QKVA+8192,c_bytes=2048*12288*2-8192,ldc=12288,K=448),
 dict(a_slot=0,a_off=0,a_bytes=2048*448*2,lda=448,b_slot=4,b_off=0,b_bytes=448*4096*2,ldb=4096,c_slot=15,c_off=L.QKVA+16384,c_bytes=2048*12288*2-16384,ldc=12288,K=448),
 dict(a_slot=7,a_off=0,a_bytes=2048*448*2,lda=448,b_slot=9,b_off=0,b_bytes=448*4096*2,ldb=4096,c_slot=15,c_off=L.QB,c_bytes=2048*4096*2,ldc=4096,K=448),
 dict(a_slot=8,a_off=0,a_bytes=2048*1024*2,lda=1024,b_slot=10,b_off=0,b_bytes=1024*4096*2,ldb=4096,c_slot=15,c_off=L.KVB,c_bytes=2048*8192*2,ldc=8192,K=1024),
 dict(a_slot=8,a_off=0,a_bytes=2048*1024*2,lda=1024,b_slot=11,b_off=0,b_bytes=1024*4096*2,ldb=4096,c_slot=15,c_off=L.KVB+8192,c_bytes=2048*8192*2-8192,ldc=8192,K=1024),
]
kernel("proj_kernel", (3072+64,1,1), (256,1,1), gemm.GEMM_LDS, 160, 64, lambda a: gemm.gemm_body(a, segs1, 3072, tag="pj", zero_wgs=64))
import chain
import attn
def merged(a):
    a("s_cmp_lt_u32 s2, 64"); a("s_cbranch_scc1 go_chain")
    a("s_cmp_ge_u32 s2, 256"); a("s_cbranch_scc1 go_end")
    a("s_sub_u32 s2, s2, 64")
    attn.attn_b_body(a)
    a.label("go_end"); a("s_endpgm")
    a.label("go_chain")
    chain.chain_body(a, 0, 64)
kernel("chain_kernel", (256,1,1), (256,1,1), chain.CH_LDS, 512, 80, merged, accum=256)

import attn
kernel("attna_kernel", (512,1,1), (128,1,1), 2*attn.AT_LDS, 320, 80, attn.attn_a_body, accum=256)
segs2 = [
 dict(a_slot=15,a_off=L.OA,a_bytes=2048*4096*2,lda=4096,b_slot=5,b_off=0,b_bytes=4096*448*2,ldb=448,c_slot=13,c_off=0,c_bytes=2048*896*2,ldc=896,K=4096),
 dict(a_slot=15,a_off=L.OB,a_bytes=2048*4096*2,lda=4096,b_slot=12,b_off=0,b_bytes=4096*448*2,ldb=448,c_slot=13,c_off=896,c_bytes=2048*896*2-896,ldc=896,K=4096),
]
kernel("oproj_kernel", (128,1,1), (256,1,1), gemm.GEMM_LDS, 160, 64, lambda a: gemm.gemm_body(a, segs2, 128, tag="op", ntn_log=2))
out = []
out += hdr
for (n,g,b,l) in launches:
    out.append(f"; @launch kernel={n} grid=({g[0]},{g[1]},{g[2]}) block=({b[0]},{b[1]},{b[2]}) lds={l}")
out.append('.amdgcn_target "amdgcn-amd-amdhsa--gfx950"')
out.append('.text')
out.append(body.text())
out.append('.section .rodata,"a"')
for (n,v,s,acc) in kernels:
    out.append('.p2align 6')
    out.append(f'.amdhsa_kernel {n}')
    out.append(f'  .amdhsa_next_free_vgpr {v}')
    out.append(f'  .amdhsa_next_free_sgpr {s}')
    out.append(f'  .amdhsa_accum_offset {acc if acc else (v+3)//4*4}')
    out.append('  .amdhsa_group_segment_fixed_size 0')
    out.append('  .amdhsa_kernarg_size 128')
    out.append('  .amdhsa_user_sgpr_count 2')
    out.append('  .amdhsa_user_sgpr_kernarg_segment_ptr 1')
    out.append('  .amdhsa_system_sgpr_workgroup_id_x 1')
    out.append('.end_amdhsa_kernel')
open(OUT,'w').write("\n".join(out)+"\n")
print("wrote", OUT, len("\n".join(out)))
```

```python
from asmlib import *
import layout as L
from gemm import load_ptrs, ptr, WSP

MEMS=912; QS=528; KS=528; VS=576; OS=528
LO=0; LQ=LO+16*OS; LMEM=LQ+16*QS; LK=LMEM+16*MEMS; LV=LK+64*KS; CH_LDS=LV+64*VS
FL1=L.FLAGS; FL2=L.FLAGS+256

def chain_body(a, s_first, s_last, nwg=64):
    done=a.newlabel("cdone")
    a(f"s_cmp_ge_u32 s2, {nwg}")
    a(f"s_cbranch_scc1 {done}")
    load_ptrs(a)
    a("v_and_b32 v1, 63, v0")
    a("v_lshrrev_b32 v2, 6, v0")
    a("s_nop 0")
    a("v_readfirstlane_b32 s60, v2")
    a("s_waitcnt lgkmcnt(0)")
    a("v_lshrrev_b32 v3, 1, v1")
    a("v_and_b32 v4, 1, v1")
    a("v_lshlrev_b32 v5, 13, v3")
    a("v_lshl_add_u32 v5, v4, 4, v5")
    a("v_mul_u32_u24 v6, 14336, v2")
    a("v_lshl_add_u32 v7, v3, 5, v6")
    a("v_lshl_add_u32 v7, v4, 4, v7")
    a("v_and_b32 v8, 15, v1")
    a("v_lshrrev_b32 v9, 4, v1")
    a("v_lshrrev_b32 v10, 2, v8")
    a("v_lshl_add_u32 v10, v9, 3, v10")
    a("v_lshlrev_b32 v10, 5, v10")
    a("v_and_b32 v8, 3, v8")
    a("v_lshl_add_u32 v10, v8, 3, v10")
    a("v_add_u32 v10, v10, v6")
    for i in range(3):
        a(f"s_mul_i32 s61, s2, 12")
        a(f"s_mul_i32 s62, s60, 3")
        a(f"s_add_u32 s61, s61, s62")
        a(f"s_add_u32 s61, s61, {i}")
        a("s_lshr_b32 s62, s61, 8")
        a("s_and_b32 s61, s61, 255")
        a("s_lshl_b32 s61, s61, 5")
        a("s_lshl_b32 s62, s62, 1")
        a("s_add_u32 s62, s62, 20")
        a("s_cmp_eq_u32 s62, 20"); a("s_cselect_b32 s64, s20, s22"); a("s_cselect_b32 s65, s21, s23")
        a("s_cmp_eq_u32 s62, 24"); a("s_cselect_b32 s64, s24, s64"); a("s_cselect_b32 s65, s25, s65")
        a("s_add_u32 s64, s64, s61"); a("s_addc_u32 s65, s65, 0")
        for r in range(14):
            a(f"global_load_dwordx4 v[{16+4*r}:{19+4*r}], v5, s[64:65] offset:0")
            a(f"v_add_u32 v5, 0x40000, v5")
        a("v_subrev_u32 v5, 0x380000, v5")
        a("s_waitcnt vmcnt(0)")
        for r in range(14):
            a(f"ds_write_b128 v7, v[{16+4*r}:{19+4*r}] offset:{r*1024}")
        a("s_waitcnt lgkmcnt(0)")
        for ks in range(14):
            for j in range(2):
                a(f"ds_read_b64_tr_b16 v[{80+2*j}:{81+2*j}], v10 offset:{(ks*32+4*j)*32}")
            a("s_waitcnt lgkmcnt(0)")
            for j in range(4):
                a(f"v_accvgpr_write_b32 a{(i*14+ks)*4+j}, v{80+j}")
    a("s_lshr_b32 s66, s2, 2")
    a("s_and_b32 s67, s2, 3")
    for i in range(2):
        a(f"s_add_u32 s61, s60, {4*i}")
        a("s_min_u32 s61, s61, 6")
        a("s_lshl_b32 s61, s61, 5")
        a("s_mul_i32 s62, s67, 224")
        a("s_add_u32 s61, s61, s62")
        a("s_mul_i32 s62, s66, 229376")
        a("s_add_u32 s61, s61, s62")
        a(f"s_add_u32 s64, s{ptr(5)}, s61"); a(f"s_addc_u32 s65, s{ptr(5)+1}, 0")
        a("v_mul_u32_u24 v5, 896, v3")
        a("v_lshl_add_u32 v5, v4, 4, v5")
        for r in range(8):
            a(f"global_load_dwordx4 v[{16+4*r}:{19+4*r}], v5, s[64:65] offset:0")
            a(f"v_add_u32 v5, {32*896}, v5")
        a("s_waitcnt vmcnt(0)")
        for r in range(8):
            a(f"ds_write_b128 v7, v[{16+4*r}:{19+4*r}] offset:{r*1024}")
        a("s_waitcnt lgkmcnt(0)")
        for ks in range(8):
            for j in range(2):
                a(f"ds_read_b64_tr_b16 v[{80+2*j}:{81+2*j}], v10 offset:{(ks*32+4*j)*32}")
            a("s_waitcnt lgkmcnt(0)")
            for j in range(4):
                a(f"v_accvgpr_write_b32 a{168+(i*8+ks)*4+j}, v{80+j}")
    a("s_barrier")
    a("v_mov_b32 v16, 0"); a("v_mov_b32 v17, 0"); a("v_mov_b32 v18, 0"); a("v_mov_b32 v19, 0")
    a("v_lshlrev_b32 v5, 4, v0")
    nz=(CH_LDS+4095)//4096
    for r in range(nz):
        a(f"ds_write_b128 v5, v[16:19]")
        a("v_add_u32 v5, 4096, v5")
    a("s_waitcnt lgkmcnt(0)")
    a("s_barrier")
    a("v_and_b32 v11, 15, v1")
    a("v_lshrrev_b32 v12, 4, v1")
    a("v_mov_b32 v13, 0")
    a(f"s_mov_b32 s68, {s_first}")
    loop=a.newlabel("cloop")
    a.label(loop)
    skipw=a.newlabel("cskipw")
    a("s_cmp_eq_u32 s68, 0")
    a(f"s_cbranch_scc1 {skipw}")
    poll(a, FL2, "s68")
    a.label(skipw)
    isz=a.newlabel("cmem0"); mdone=a.newlabel("cmemd")
    a("s_cmp_eq_u32 s68, 0")
    a(f"s_cbranch_scc1 {isz}")
    a("s_mul_i32 s61, s68, 14336")
    a(f"s_add_u32 s61, s61, {L.MEMACC}")
    for i in range(4):
        a(f"v_add_u32 v5, {256*i}, v0")
        a("v_cmp_gt_u32 vcc, 896, v5")
        a("s_and_saveexec_b64 s[70:71], vcc")
        a("v_lshlrev_b32 v6, 4, v5")
        a("v_add_u32 v6, s61, v6")
        a(f"global_load_dwordx4 v[{64+4*i}:{67+4*i}], v6, s[{WSP}:{WSP+1}] sc1")
        a("s_mov_b64 exec, s[70:71]")
    for i in range(4):
        a(f"v_add_u32 v5, {256*i}, v0")
        a("v_cmp_gt_u32 vcc, 896, v5")
        a("s_and_saveexec_b64 s[70:71], vcc")
        a("v_mul_u32_u24 v7, 0x4925, v5")
        a("v_lshrrev_b32 v7, 21, v7")
        a("v_mul_u32_u24 v8, 112, v7")
        a("v_sub_u32 v8, v5, v8")
        a(f"v_mul_u32_u24 v7, {MEMS}, v7")
        a("v_lshl_add_u32 v7, v8, 3, v7")
        a(f"s_waitcnt vmcnt({3-i})")
        a(f"v_cvt_pk_bf16_f32 v16, v{64+4*i}, v{65+4*i}")
        a(f"v_cvt_pk_bf16_f32 v17, v{66+4*i}, v{67+4*i}")
        a(f"ds_write_b64 v7, v[16:17] offset:{LMEM}")
        a("s_mov_b64 exec, s[70:71]")
    a(f"s_branch {mdone}")
    a.label(isz)
    for i in range(2):
        a(f"v_add_u32 v5, {256*i}, v0")
        a("v_cmp_gt_u32 vcc, 448, v5")
        a("s_and_saveexec_b64 s[70:71], vcc")
        a("v_lshlrev_b32 v6, 4, v5")
        a(f"global_load_dwordx4 v[16:19], v6, s[{ptr(1)}:{ptr(1)+1}]")
        a("v_mul_u32_u24 v7, 0x2493, v5")
        a("v_lshrrev_b32 v7, 19, v7")
        a("v_mul_u32_u24 v8, 56, v7")
        a("v_sub_u32 v8, v5, v8")
        a(f"v_mul_u32_u24 v7, {MEMS}, v7")
        a("v_lshl_add_u32 v7, v8, 4, v7")
        a("s_waitcnt vmcnt(0)")
        a(f"ds_write_b128 v7, v[16:19] offset:{LMEM}")
        a("s_mov_b64 exec, s[70:71]")
    a.label(mdone)
    a("s_waitcnt lgkmcnt(0)")
    a("s_barrier")
    a(f"v_mul_u32_u24 v5, {MEMS}, v11")
    a("v_lshl_add_u32 v5, v12, 4, v5")
    for i in range(12): a(f"v_mov_b32 v{32+i}, 0")
    for ks in range(14):
        a(f"ds_read_b128 v[{64+4*ks}:{67+4*ks}], v5 offset:{LMEM+ks*64}")
    for ks in range(14):
        a(f"s_waitcnt lgkmcnt({13-ks})")
        for i in range(3):
            a(f"v_mfma_f32_16x16x32_bf16 v[{32+4*i}:{35+4*i}], a[{(i*14+ks)*4}:{(i*14+ks)*4+3}], v[{64+4*ks}:{67+4*ks}], v[{32+4*i}:{35+4*i}]")
    a("s_nop 7"); a("s_nop 7")
    a("s_mul_i32 s61, s68, 196608")
    a(f"s_add_u32 s61, s61, {L.QKVM}")
    a("s_mul_i32 s62, s2, 12"); a("s_mul_i32 s63, s60, 3"); a("s_add_u32 s62, s62, s63")
    a("s_lshl_b32 s62, s62, 5")
    a("s_add_u32 s61, s61, s62")
    a("v_mul_u32_u24 v6, 24576, v11")
    a("v_lshl_add_u32 v6, v12, 3, v6")
    a("v_add_u32 v6, s61, v6")
    a("v_cmp_gt_u32 vcc, 8, v11")
    a("s_and_saveexec_b64 s[70:71], vcc")
    for i in range(3):
        a(f"v_cvt_pk_bf16_f32 v{20+2*i}, v{32+4*i}, v{33+4*i}")
        a(f"v_cvt_pk_bf16_f32 v{21+2*i}, v{34+4*i}, v{35+4*i}")
        a(f"global_store_dwordx2 v6, v[{20+2*i}:{21+2*i}], s[{WSP}:{WSP+1}] offset:{32*i} sc1")
    a("s_mov_b64 exec, s[70:71]")
    post(a, FL1)
    a("s_mul_i32 s61, s68, 786432")
    a("s_lshl_b32 s62, s66, 9")
    a("s_add_u32 s61, s61, s62")
    a("v_lshrrev_b32 v5, 5, v0")
    a("v_and_b32 v6, 31, v0")
    a("v_mul_u32_u24 v7, 24576, v5")
    a("v_lshl_add_u32 v7, v6, 4, v7")
    a("v_add_u32 v7, s61, v7")
    a("v_add_u32 v7, 8192, v7")
    for p in range(4):
        a(f"global_load_dwordx4 v[{64+4*p}:{67+4*p}], v7, s[{WSP}:{WSP+1}] offset:0")
        a(f"v_add_u32 v7, {8*24576}, v7")
    a("v_subrev_u32 v7, {0}, v7".format(32*24576-8192))
    for p in range(4):
        a(f"global_load_dwordx4 v[{80+4*p}:{83+4*p}], v7, s[{WSP}:{WSP+1}] offset:0")
        a(f"v_add_u32 v7, {8*24576}, v7")
    a("s_add_u32 s69, s68, 1")
    poll(a, FL1, "s69")
    a("s_mul_i32 s61, s68, 196608")
    a(f"s_add_u32 s61, s61, {L.QKVM}")
    a("s_add_u32 s61, s61, s62")
    a("v_mul_u32_u24 v7, 24576, v5")
    a("v_lshl_add_u32 v7, v6, 4, v7")
    a("v_add_u32 v7, s61, v7")
    for m in range(3):
        a(f"global_load_dwordx4 v[{96+4*m}:{99+4*m}], v7, s[{WSP}:{WSP+1}] offset:0 sc1")
        a("v_add_u32 v7, 8192, v7")
    a("s_waitcnt vmcnt(0)")
    a(f"v_mul_u32_u24 v8, {KS}, v5"); a("v_lshl_add_u32 v8, v6, 4, v8")
    a(f"v_mul_u32_u24 v9, {VS}, v5"); a("v_lshl_add_u32 v9, v6, 4, v9"); a(f"v_add_u32 v9, {LV}, v9")
    a(f"ds_write_b128 v8, v[96:99] offset:{LQ}")
    a(f"ds_write_b128 v8, v[100:103] offset:{LK}")
    a(f"ds_write_b128 v9, v[104:107] offset:0")
    for p in range(4):
        a(f"ds_write_b128 v8, v[{64+4*p}:{67+4*p}] offset:{LK+(8+8*p)*KS}")
        a(f"ds_write_b128 v9, v[{80+4*p}:{83+4*p}] offset:{(8+8*p)*VS}")
    a("s_waitcnt lgkmcnt(0)")
    a("s_barrier")
    a(f"v_mul_u32_u24 v5, {KS}, v11"); a("v_lshl_add_u32 v5, v12, 4, v5")
    for i in range(12): a(f"v_mov_b32 v{32+i}, 0")
    for ks in range(8):
        a(f"ds_read_b128 v[16:19], v5 offset:{LQ+ks*64}")
        for t in range(3):
            a(f"ds_read_b128 v[{20+4*t}:{23+4*t}], v5 offset:{LK+t*16*KS+ks*64}")
        a("s_waitcnt lgkmcnt(0)")
        for t in range(3):
            a(f"v_mfma_f32_16x16x32_bf16 v[{32+4*t}:{35+4*t}], v[{20+4*t}:{23+4*t}], v[16:19], v[{32+4*t}:{35+4*t}]")
    a("s_nop 7"); a("s_nop 7")
    a("v_cmp_gt_u32 vcc, 2, v12")
    for i in range(12):
        a(f"v_cvt_pk_bf16_f32 v16, v{32+i}, v{32+i}")
        a(f"v_lshlrev_b32 v{32+i}, 16, v16")
        a(f"v_mul_f32 v{32+i}, 0x3d800000, v{32+i}")
    a("v_mov_b32 v16, 0xf149f2ca")
    for i in range(8,12):
        a(f"v_cndmask_b32 v{32+i}, v16, v{32+i}, vcc")
    a("v_max3_f32 v17, v32, v33, v34")
    for i in range(3,12,2):
        a(f"v_max_f32 v17, v17, v{32+i}")
        if i+1<12: a(f"v_max_f32 v17, v17, v{33+i}")
    xmax(a, "v17", "max")
    a("v_mov_b32 v18, 0")
    a("v_mov_b32 v19, 0x3fb8aa3b")
    for i in range(12):
        a(f"v_sub_f32 v{32+i}, v{32+i}, v17")
        a(f"v_mul_f32 v{32+i}, v19, v{32+i}")
        a(f"v_exp_f32 v{32+i}, v{32+i}")
    a("s_nop 0")
    for i in range(12): a(f"v_add_f32 v18, v18, v{32+i}")
    xmax(a, "v18", "add")
    a("v_rcp_f32 v18, v18")
    a("s_nop 0")
    for i in range(12): a(f"v_mul_f32 v{32+i}, v18, v{32+i}")
    for i in range(6):
        a(f"v_cvt_pk_bf16_f32 v{44+i}, v{32+2*i}, v{33+2*i}")
    a("v_mov_b32 v50, 0"); a("v_mov_b32 v51, 0")
    a("v_and_b32 v6, 3, v11"); a("v_lshrrev_b32 v7, 2, v11")
    a("v_lshl_add_u32 v7, v12, 2, v7")
    a(f"v_mul_u32_u24 v7, {VS}, v7")
    a("v_lshl_add_u32 v7, v6, 3, v7")
    a("s_lshl_b32 s61, s60, 7")
    a("v_add_u32 v7, s61, v7")
    a(f"v_add_u32 v7, {LV}, v7")
    for i in range(16): a(f"v_mov_b32 v{52+i}, 0")
    for u in range(2):
        for mt in range(4):
            a(f"ds_read_b64_tr_b16 v[{16}:{17}], v7 offset:{(32*u)*VS+mt*32}")
            a(f"ds_read_b64_tr_b16 v[{18}:{19}], v7 offset:{(32*u+16)*VS+mt*32}")
            a("s_waitcnt lgkmcnt(0)")
            a(f"v_mfma_f32_16x16x32_bf16 v[{52+4*mt}:{55+4*mt}], v[16:19], v[{44+4*u}:{47+4*u}], v[{52+4*mt}:{55+4*mt}]")
    a("s_nop 7"); a("s_nop 7")
    a(f"v_mul_u32_u24 v5, {OS}, v11"); a("v_lshl_add_u32 v5, v12, 3, v5"); a("v_add_u32 v5, s61, v5")
    for mt in range(4):
        a(f"v_cvt_pk_bf16_f32 v16, v{52+4*mt}, v{53+4*mt}")
        a(f"v_cvt_pk_bf16_f32 v17, v{54+4*mt}, v{55+4*mt}")
        a(f"ds_write_b64 v5, v[16:17] offset:{LO+mt*32}")
        a("s_nop 0")
    a("s_waitcnt lgkmcnt(0)")
    a("s_barrier")
    a(f"v_mul_u32_u24 v5, {OS}, v11"); a("v_lshl_add_u32 v5, v12, 4, v5")
    for i in range(8): a(f"v_mov_b32 v{32+i}, 0")
    for ks in range(8):
        a(f"ds_read_b128 v[16:19], v5 offset:{LO+ks*64}")
        a("s_waitcnt lgkmcnt(0)")
        for i in range(2):
            a(f"v_mfma_f32_16x16x32_bf16 v[{32+4*i}:{35+4*i}], a[{168+(i*8+ks)*4}:{168+(i*8+ks)*4+3}], v[16:19], v[{32+4*i}:{35+4*i}]")
    a("s_nop 7"); a("s_nop 7")
    a("s_add_u32 s61, s68, 1"); a("s_mul_i32 s61, s61, 14336"); a(f"s_add_u32 s61, s61, {L.MEMACC}")
    a("s_mul_i32 s62, s67, 448"); a("s_add_u32 s61, s61, s62")
    a("v_mul_u32_u24 v6, 1792, v11"); a("v_lshl_add_u32 v6, v12, 4, v6"); a("v_add_u32 v6, s61, v6")
    a("v_cmp_gt_u32 vcc, 8, v11")
    a("s_and_saveexec_b64 s[70:71], vcc")
    for i in range(2):
        sk=a.newlabel("cska")
        a(f"s_add_u32 s62, s60, {4*i}")
        a("s_cmp_gt_u32 s62, 6")
        a(f"s_cbranch_scc1 {sk}")
        a("s_lshl_b32 s62, s62, 6")
        a("v_add_u32 v7, s62, v6")
        for j in range(4):
            a(f"global_atomic_add_f32 v7, v{32+4*i+j}, s[{WSP}:{WSP+1}] offset:{4*j}")
        a.label(sk)
    a("s_mov_b64 exec, s[70:71]")
    post(a, FL2)
    a("s_add_u32 s68, s68, 1")
    a(f"s_cmp_lt_u32 s68, {s_last}")
    a(f"s_cbranch_scc1 {loop}")
    a.label(done)
    a("s_endpgm")

def xmax(a, v, op):
    for x in (16,32):
        a(f"v_xor_b32 v14, {x}, v1")
        a("v_lshlrev_b32 v14, 2, v14")
        a(f"ds_bpermute_b32 v15, v14, {v}")
        a("s_waitcnt lgkmcnt(0)")
        a(f"v_{op}_f32 {v}, {v}, v15")

def poll(a, floff, stag:str):
    lp=a.newlabel("poll"); dn=a.newlabel("polld")
    a("s_cmp_lg_u32 s60, 0")
    a(f"s_cbranch_scc1 {dn}")
    a("v_lshlrev_b32 v14, 2, v1")
    a(f"v_add_u32 v14, {floff}, v14")
    a.label(lp)
    a(f"global_load_dword v15, v14, s[{WSP}:{WSP+1}] sc1")
    a("s_waitcnt vmcnt(0)")
    a(f"v_cmp_le_u32 vcc, {stag}, v15")
    a("s_nop 1")
    a("s_cmp_eq_u64 vcc, exec")
    a(f"s_cbranch_scc1 {dn}")
    a(f"s_branch {lp}")
    a.label(dn)
    a("s_barrier")

def post(a, floff):
    sk=a.newlabel("post")
    a("s_waitcnt vmcnt(0)")
    a("s_barrier")
    a("v_cmp_eq_u32 vcc, 0, v0")
    a("s_and_saveexec_b64 s[70:71], vcc")
    a(f"s_cbranch_execz {sk}")
    a("s_add_u32 s61, s68, 1")
    a("v_mov_b32 v15, s61")
    a("s_lshl_b32 s62, s2, 2")
    a("v_mov_b32 v14, s62")
    a(f"v_add_u32 v14, {floff}, v14")
    a(f"global_store_dword v14, v15, s[{WSP}:{WSP+1}] sc1")
    a.label(sk)
    a("s_mov_b64 exec, s[70:71]")
```
